```python
import torch

def _softmax(x, axis=-1):
    return torch.softmax(x, dim=axis)

def _gelu(x):
    return torch.nn.functional.gelu(x, approximate='tanh')

def _silu(x):
    return torch.nn.functional.silu(x)

def _sigmoid(x):
    return torch.sigmoid(x)

def _layernorm(x, axis=-1, eps=1e-05):
    m = x.mean(dim=axis, keepdim=True)
    v = x.var(dim=axis, keepdim=True, unbiased=False)
    return (x - m) / torch.sqrt(v + eps)

def _scatter_add(tgt, idx, src, axis=0):
    return tgt.clone().index_add_(axis, idx, src)

def _segment_sum(src, seg, n):
    out = torch.zeros((n,) + src.shape[1:], dtype=src.dtype)
    return out.index_add_(0, seg, src)

def _pad(x, pw):
    flat = tuple((v for pair in reversed(pw) for v in pair))
    return torch.nn.functional.pad(x, flat)
kernel_name = 'interleave_layers__linear_attn_block__mixer_gmlp__prompt'

def setup_inputs():

    _w = lambda a: (lambda t: t.to(torch.bfloat16) if t.is_floating_point() else t)(torch.as_tensor(a))

    def _A_setup():
        B, S, D = (1, 2048, 640)
        return {'x': _w((lambda *s: torch.randn(*s, dtype=torch.bfloat16) * 0.05)(B, S, D)), 'wqkv': _w((lambda *s: torch.randn(*s, dtype=torch.bfloat16) * 0.05)(D, 3 * D)), 'wo': _w((lambda *s: torch.randn(*s, dtype=torch.bfloat16) * 0.05)(D, D))}
    _A_in = _A_setup()

    def _B_setup():
        B, S, D, F = (1, 2048, 640, 1536)
        Fh = F // 2
        return {'x': _w((lambda *s: torch.randn(*s, dtype=torch.bfloat16) * 0.05)(B, S, D)), 'w_in': _w((lambda *s: torch.randn(*s, dtype=torch.bfloat16) * 0.2)(D, 2 * Fh)), 'w_sp': _w(0.01 * (lambda *s: torch.randn(*s, dtype=torch.bfloat16) * 0.2)(S, S)), 'b_sp': _w(1.0 + 0.01 * (lambda *s: torch.randn(*s, dtype=torch.bfloat16) * 0.05)(S)), 'w_out': _w((lambda *s: torch.randn(*s, dtype=torch.bfloat16) * 0.05)(Fh, D))}
    _B_in = _B_setup()
    return {'A_x': _A_in['x'], 'A_wqkv': _A_in['wqkv'], 'A_wo': _A_in['wo'], 'B_x': _B_in['x'], 'B_w_in': _B_in['w_in'], 'B_w_sp': _B_in['w_sp'], 'B_b_sp': _B_in['b_sp'], 'B_w_out': _B_in['w_out']}

def reference(A_x, A_wqkv, A_wo, B_x, B_w_in, B_w_sp, B_b_sp, B_w_out):

    def _A_ref(x, wqkv, wo):
        B, S, D = x.shape
        H = 32
        Dh = D // H
        qkv = (lambda x, *d: x.permute(*d))((x @ wqkv).reshape(B, S, 3, H, Dh), 2, 0, 3, 1, 4)
        q, k, v = (qkv[0], qkv[1], qkv[2])
        phi = lambda t: torch.where(t > 0, t + 1, torch.exp(t)) + 1e-06
        pq, pk = (phi(q), phi(k))
        kv = torch.einsum('bhsd,bhse->bhde', pk, v)
        z = torch.einsum('bhsd->bhd', pk)
        num = torch.einsum('bhqd,bhde->bhqe', pq, kv)
        den = torch.einsum('bhqd,bhd->bhq', pq, z)[..., None] + 1e-06
        o = num / den
        return (lambda x, *d: x.permute(*d))(o, 0, 2, 1, 3).reshape(B, S, D) @ wo

    def _B_ref(x, w_in, w_sp, b_sp, w_out):
        B, S, D = x.shape
        F = w_in.shape[-1]
        Fh = F // 2
        z = _gelu(torch.einsum('bsd,df->bsf', x, w_in))
        z1 = z[..., :Fh].clone()
        z2 = _layernorm(z[..., Fh:], axis=-1)
        g = torch.einsum('ts,bsf->btf', w_sp, z2) + b_sp[None, :, None]
        return torch.einsum('bsf,fd->bsd', z1 * g, w_out)
    x = A_x
    x = x + _A_ref(_layernorm(x, axis=-1), A_wqkv, A_wo)
    x = x + _B_ref(_layernorm(x, axis=-1), B_w_in, B_w_sp, B_b_sp, B_w_out)
    x = x + _A_ref(_layernorm(x, axis=-1), A_wqkv, A_wo)
    x = x + _B_ref(_layernorm(x, axis=-1), B_w_in, B_w_sp, B_b_sp, B_w_out)
    return x
```

```python
import re

def v(i, n=1): return f"v{i}" if n == 1 else f"v[{i}:{i+n-1}]"
def a(i, n=1): return f"a{i}" if n == 1 else f"a[{i}:{i+n-1}]"
def s(i, n=1): return f"s{i}" if n == 1 else f"s[{i}:{i+n-1}]"

def magic(div, maxx):
    for sh in range(4, 24):
        mul = -(-(1 << sh) // div)
        if maxx * mul < (1 << 24) and all((x * mul) >> sh == x // div for x in range(maxx + 1)):
            return mul, sh
    raise ValueError((div, maxx))

class Emit:
    def __init__(self):
        self.L = []
        self.vmq = []
        self.lgq = []
        self.nl = 0
    def __call__(self, text):
        for line in text.strip("\n").split("\n"):
            line = line.strip()
            if line: self.L.append(line)
    def label(self, name): self.L.append(name + ":")
    def newlabel(self, base):
        self.nl += 1
        return f"L{base}_{self.nl}"
    def vm(self, text, tag="_"):
        self(text); self.vmq.append(tag); assert len(self.vmq) <= 63, "vmcnt overflow"
    def ds(self, text, tag="_"):
        self(text); self.lgq.append(tag)
    def _cnt(self, q, tag):
        idx = [i for i, t in enumerate(q) if t == tag]
        if not idx: return None
        return len(q) - 1 - idx[-1]
    def wait_vm(self, tag=None):
        n = 0 if tag is None else self._cnt(self.vmq, tag)
        if n is None: return
        self(f"s_waitcnt vmcnt({n})")
        self.vmq = self.vmq[len(self.vmq) - n:] if n else []
    def wait_ds(self, tag=None):
        n = 0 if tag is None else self._cnt(self.lgq, tag)
        if n is None: return
        n = min(n, 15)
        self(f"s_waitcnt lgkmcnt({n})")
        self.lgq = self.lgq[len(self.lgq) - n:] if n else []

_REG = re.compile(r"^(-|\|)?(abs\()?([vas])(\d+|\[(\d+):(\d+)\])\)?\|?$")
def regs_of(op):
    op = op.strip()
    if op in ("vcc", "exec"): return [(op, 0)]
    if op == "m0": return [("m0", 0)]
    m = _REG.match(op)
    if not m: return []
    c = m.group(3)
    if m.group(5) is not None: return [(c, i) for i in range(int(m.group(5)), int(m.group(6)) + 1)]
    return [(c, int(m.group(4)))]

TRANS = ("v_exp_f32", "v_log_f32", "v_rcp_f32", "v_rsq_f32", "v_sqrt_f32", "v_sin_f32", "v_cos_f32")

class Ins:
    def __init__(self, text):
        self.text = text
        t = text.split(";")[0].strip()
        self.mn, _, rest = t.partition(" ")
        ops = []
        for piece in rest.split(","):
            piece = piece.strip()
            if piece: ops.append(piece.split(" ")[0])
        ops = [o for o in ops if not o.startswith(("op_sel", "quad_perm", "neg_"))]
        mn = self.mn
        R = lambda lst: [r for o in lst for r in regs_of(o)]
        self.w = []; self.r = []; self.A = []; self.C = []; self.data = []
        self.kind = "other"; self.passes = 0
        self.dpp = "_dpp" in mn or "row_" in t or "quad_perm" in t
        if mn.startswith("v_mfma"):
            self.kind = "mfma"; self.passes = 8 if "32x32" in mn else 4
            self.w = R(ops[:1]); self.A = R(ops[1:3]); self.C = R(ops[3:4]); self.r = self.A + self.C
        elif mn.startswith("v_"):
            self.kind = "valu"
            if mn.startswith("v_permlane"):
                self.w = R(ops); self.r = R(ops)
            elif mn.startswith(("v_add_co", "v_sub_co", "v_addc_co", "v_subb_co")):
                self.w = R(ops[:2]); self.r = R(ops[2:])
            else:
                self.w = R(ops[:1]); self.r = R(ops[1:])
                if mn.startswith(("v_fmac", "v_dot2c", "v_writelane")) or self.dpp: self.r += self.w
        elif mn.startswith("ds_"):
            self.kind = "ds"
            if mn.startswith(("ds_read", "ds_bpermute", "ds_permute", "ds_swizzle")):
                self.w = R(ops[:1]); self.r = R(ops[1:])
            else: self.r = R(ops)
        elif mn.startswith(("buffer_", "global_")):
            self.kind = "vmem"
            self.lds = t.endswith(" lds") or " lds " in t
            if "load" in mn and not self.lds:
                self.w = R(ops[:1]); self.r = R(ops[1:])
            else:
                self.r = R(ops)
                if "atomic" in mn and " sc0" in t: self.w = R(ops[:1])
                if "store" in mn and mn.endswith(("x3", "x4")):
                    self.data = R(ops[:1]) if mn.startswith("buffer") else R(ops[1:2])
        elif mn.startswith("s_"):
            self.kind = "salu"
            if mn == "s_nop": self.nop = int(ops[0], 0) + 1
            if ops and not mn.startswith(("s_cmp", "s_cbranch", "s_branch", "s_waitcnt", "s_nop", "s_bitcmp", "s_sleep", "s_setprio")):
                self.w = R(ops[:1])
            self.target = ops[0] if mn.startswith(("s_cbranch", "s_branch")) else None
        self.states = getattr(self, "nop", 1)

CAP = 24
def need(st, I):
    miss = 0
    def req(ev, reg, n):
        nonlocal miss
        e = st.get((ev, reg))
        if e is not None:
            nn = n(e[1]) if callable(n) else n
            miss = max(miss, nn - e[0])
    dres = lambda info: 8 if info[0] == 4 else 12
    if I.kind == "mfma":
        for r in I.r: req("vw", r, 2); req("dot", r, 3)
        for r in I.A: req("mw", r, dres)
        for r in I.C: req("mw", r, lambda info: 0 if (info[1] == tuple(I.C) and info[0] == I.passes) else (6 if info[0] == 4 else 10))
        if not I.C:
            for r in I.w: req("mw", r, dres)
    elif I.kind in ("valu", "ds", "vmem"):
        for r in I.r + I.w: req("mw", r, dres)
        for r in I.r:
            req("tw", r, 1)
            if not (I.mn.startswith("v_dot2")): req("dot", r, 3)
        for r in I.w:
            req("sd", r, 2)
            if I.kind == "valu": req("mc", r, lambda info: 3 if info == 4 else 7)
        if I.kind == "valu":
            for r in I.r:
                if I.dpp or I.mn.startswith("v_permlane"): req("vw", r, 2)
                if I.mn.startswith(("v_readlane", "v_readfirstlane")): req("vw", r, 1)
                req("sw", r, 4 if I.mn.startswith(("v_readlane", "v_writelane")) else 2)
        if I.kind == "vmem":
            for r in I.r: req("sw", r, 5)
            if getattr(I, "lds", False): req("m0", ("m0", 0), 1)
        if I.mn.startswith("v_writelane"): req("m0", ("m0", 0), 1)
    return miss

def advance(st, n):
    return {k: (e[0] + n, e[1]) for k, e in st.items() if e[0] + n < CAP}

def apply(st, I):
    st = advance(st, I.states)
    if I.kind == "mfma":
        for r in I.w: st[("mw", r)] = (0, (I.passes, tuple(I.w))); st.pop(("vw", r), None)
        for r in I.C: st[("mc", r)] = (0, I.passes)
    elif I.kind == "valu":
        for r in I.w:
            if r[0] in ("v", "a"):
                st[("vw", r)] = (0, None); st.pop(("mw", r), None); st.pop(("tw", r), None); st.pop(("dot", r), None)
                if I.mn.startswith(TRANS): st[("tw", r)] = (0, None)
                if I.mn.startswith("v_dot2"): st[("dot", r)] = (0, None)
            else: st[("sw", r)] = (0, None)
    elif I.kind == "vmem":
        for r in I.data: st[("sd", r)] = (0, None)
    elif I.kind == "salu":
        for r in I.w:
            st.pop(("sw", r), None)
            if r[0] == "m0": st[("m0", r)] = (0, None)
    return st

def merge(x, y):
    if x is None: return dict(y)
    out = dict(x)
    for k, e in y.items():
        if k not in out or e[0] < out[k][0]: out[k] = e
    return out

def pad_hazards(lines):
    items = [(l, None if (l.endswith(":") or l.startswith((".", ";"))) else Ins(l)) for l in lines]
    total = 0
    atlabel = {}
    for _ in range(6):
        out = []; st = {}; added = 0; newat = {}
        dead = False
        for l, I in items:
            if I is None:
                if l.endswith(":"):
                    inc = merge(atlabel.get(l[:-1]), newat.get(l[:-1], {}))
                    st = inc if dead else merge(st, inc)
                    dead = False
                out.append((l, I)); continue
            m = need(st, I)
            while m > 0:
                k = min(m, 16)
                N = Ins(f"s_nop {k-1}"); out.append((N.text, N)); st = apply(st, N); m -= k; added += 1
            out.append((l, I)); st = apply(st, I)
            if I.kind == "salu" and I.target:
                newat[I.target] = merge(newat.get(I.target), st)
                if I.mn == "s_branch": dead = True
            if I.mn == "s_endpgm": dead = True
        items = out; total += added
        same = newat == atlabel
        atlabel = newat
        if not added and same: break
    return [l for l, _ in items], total
```

```python
def _al(x, a=4096): return -(-x // a) * a

T_QKV, T_O, T_IN, T_OUT = 153600, 102400, 122880, 122880
XA_SZ, UA_SZ, ST_SZ = 2048 * 640 * 2, 2048 * 768 * 2, 128 * 1024
KV_REC = 3456
POISON_PER_WG = 8960

class WS:
    def __init__(self, reuse):
        o = 0
        def take(n):
            nonlocal o
            r = o; o = _al(o + n); return r
        self.FLAGS = take(2 * 49152)
        self.FLS = 49152
        self.F_O, self.F_X1, self.F_U, self.F_X2, self.F_Z = [self.FLAGS + x for x in (0, 4096, 8192, 12288, 16384)]
        self.FA = take(256 * 128)
        self.FB = take(256 * 32)
        self.POISON = take(256 * POISON_PER_WG)
        self.KVP = self.POISON
        self.KVP_L = 256 * KV_REC
        self.S3 = self.POISON + 2 * self.KVP_L
        self.S3_L = 1024 * 256
        assert 2 * self.KVP_L + 2 * self.S3_L == 256 * POISON_PER_WG
        self.CS_QKV = take(16 * 8 * 512)
        self.CS_IN = take(16 * 10 * 384)
        self.PW_QKV = take(16 * T_QKV)
        self.PW_O = take(8 * T_O)
        self.PW_IN = take(16 * T_IN)
        self.PW_OUT = take(8 * T_OUT)
        base = o
        self.X0 = take(XA_SZ); self.ST0 = take(ST_SZ); self.O = take(XA_SZ); self.X1 = take(XA_SZ); self.ST1 = take(ST_SZ)
        self.Z1 = take(UA_SZ); self.ZT = take(UA_SZ); self.U = take(UA_SZ)
        self.LSTR = 0 if reuse else o - base
        o += self.LSTR
        self.PROF = take(1024 * 256)
        self.END = o

SCR = 153600
L_BC = SCR
L_ST = SCR + 256
L_CSQ = SCR + 1280
L_CSI = SCR + 1792
L_KVT = SCR + 2304
LDS_BYTES = 163840
def lds_kv(ks): return 122880 + 5120 * ks if ks < 6 else 5120 * (ks - 6)
def lds_q(ks): return 71680 + 2560 * ks
def lds_z2(ks): return 71680 + 3072 * ks if ks < 16 else 122880 + 3072 * (ks - 16)
def lds_z1(ks): return 3072 * ks
def lds_out(ks): return 5120 * ks
L_RED = 79872
OOB = 0x40000000
```

```python
from kemit import *
from layout import *
from gen import *

W = f"s[{WSR}:{WSR+3}]"
MF = "v_mfma_f32_16x16x32_bf16"
MF32 = "v_mfma_f32_32x32x16_bf16"

def pkb(reg):
    return v(reg & ~1, 2), reg & 1

def pk(e, op, d, srcs):
    ops, lo, hi = [], [], []
    for k, r in srcs:
        if k == "p": ops.append(v(r, 2)); lo.append(0); hi.append(1)
        else:
            t, sel = pkb(r); ops.append(t); lo.append(sel); hi.append(sel)
    e(f"v_pk_{op}_f32 {v(d, 2)}, {', '.join(ops)} op_sel:[{','.join(map(str, lo))}] op_sel_hi:[{','.join(map(str, hi))}]")

def a_loads(G, sbase, voff, tiles, nks, tilestride, immT=0):
    e = G.e
    out = []
    for ks in range(nks):
        def ld(ks=ks):
            for T in range(tiles):
                e(f"s_add_u32 s60, s{sbase}, {T * tilestride + 4096 * (ks >> 2)}")
                e.vm(f"buffer_load_dwordx4 {a((ks * tiles + T) * 4, 4)}, v{voff}, {W}, s60 offen offset:{1024 * (ks & 3) + immT * T} sc1", ("A", ks))
        out.append(ld)
    return out

def phi(e, items, t):
    for n, (ac, rs, rl, dst) in enumerate(items):
        u = t + 4 * (n & 1)
        pk(e, "mul", u, [("p", ac), rl])
        pk(e, "fma", u + 2, [("p", ac), rs, ("b", vC1E)])
        e(f"v_exp_f32_e64 v{u}, v{u} clamp\nv_exp_f32_e64 v{u + 1}, v{u + 1} clamp")
        e(f"v_max_f32 v{u}, v{u}, v{u + 2}\nv_max_f32 v{u + 1}, v{u + 1}, v{u + 3}")
        pk(e, "add", u, [("p", u), ("b", vC1E + 1)])
        if callable(dst): dst(u)
        else: e(f"v_cvt_pk_bf16_f32 v{dst}, v{u}, v{u + 1}")

def gelu(e, items, t):
    for i in range(0, len(items), 2):
        grp = items[i:i + 2]
        for n, (ac, rs) in enumerate(grp): pk(e, "mul", ac, [("p", ac), rs])
        for n, (ac, rs) in enumerate(grp): pk(e, "mul", t + 2 * n, [("p", ac), ("p", ac)])
        for n, (ac, rs) in enumerate(grp): pk(e, "fma", t + 2 * n, [("p", t + 2 * n), ("b", vK01 + 1), ("b", vK01)])
        for n, (ac, rs) in enumerate(grp): pk(e, "mul", t + 2 * n, [("p", t + 2 * n), ("p", ac)])
        for j in range(2 * len(grp)): e(f"v_exp_f32 v{t + j}, v{t + j}")
        for n, (ac, rs) in enumerate(grp): pk(e, "add", t + 2 * n, [("p", t + 2 * n), ("b", vC1E)])
        for j in range(2 * len(grp)): e(f"v_rcp_f32 v{t + j}, v{t + j}")
        for n, (ac, rs) in enumerate(grp): pk(e, "mul", ac, [("p", ac), ("p", t + 2 * n)])

def sentinel_retry(G, issue, regs, t):
    e = G.e
    chk, ok = e.newlabel("chk"), e.newlabel("ok")
    e(f"s_mov_b32 s{sSpin}, 0")
    e.wait_vm("sent")
    saved = list(e.vmq)
    e.label(chk)
    e(f"v_max_u32 v{t}, v{regs[0]}, v{regs[1]}")
    for i in range(2, len(regs), 2): e(f"v_max3_u32 v{t}, v{regs[i]}, v{regs[i + 1]}, v{t}")
    e(f"""v_cmp_eq_u32 vcc, -1, v{t}
s_add_u32 s{sSpin}, s{sSpin}, 1
s_cmp_eq_u64 vcc, 0
s_cbranch_scc1 {ok}
s_cmp_ge_u32 s{sSpin}, {SPIN_MAX}
s_cbranch_scc1 LEND""")
    e.vmq = []
    issue()
    e(f"s_waitcnt vmcnt(0)\ns_branch {chk}")
    e.label(ok)
    e.vmq = saved

def p1(G):
    e, ws = G.e, G.ws
    ACC, QAC, RING = 40, 80, 104
    NM, RS, RL, CSK, NMT, RST, RLT, CSQ, T0, OP = 144, 152, 160, 168, 174, 176, 178, 180, 192, 220
    e.label("LP1_WAIT")
    e(f"""s_lshl_b32 s63, s{sX}, 3
s_lshl_b32 s60, s{sRB}, 2
s_add_u32 s63, s63, s60
s_add_u32 s63, s63, s{sW}
s_lshl_b32 s63, s63, 6
s_add_u32 s63, s63, {ws.F_X2}
v_lshlrev_b32 v26, 2, v{vLane}""")
    G.poll(26, "s63", "0xffff", True)
    e.label("LP1_GO")
    G.stamp(5)
    e(f"s_lshl_b32 s62, s{sRT1}, 10\ns_add_u32 s62, s62, s{sLoff}\ns_add_u32 s62, s62, {ws.ST0}")
    e.vm(f"buffer_load_dwordx4 {v(T0, 4)}, v{vL0}, {W}, s62 offen sc1", "st")
    e.vm(f"buffer_load_dwordx4 {v(T0 + 4, 4)}, v{vL0}, {W}, s62 offen offset:1024 sc1", "st")
    e(f"s_mul_i32 s64, s{sRT1}, 20480\ns_add_u32 s64, s64, s{sLoff}\ns_add_u32 s64, s64, {ws.X0}")
    AL = a_loads(G, 64, vL0, 2, 20, 20480)
    D = 4
    for ks in range(D): AL[ks]()
    e("s_barrier")
    e.wait_vm("st")
    G.row_stats(T0, T0 + 4, T0 + 8)
    e(f"""s_lshl_b32 s60, s{sW}, 8
s_add_u32 s60, s60, {L_ST}
v_lshl_add_u32 v26, v{vG}, 4, s60
v_lshl_add_u32 v27, v{vC}, 2, s60
v_lshlrev_b32 v28, 2, v{vC}
v_add_u32 v28, {L_CSQ}, v28
v_lshlrev_b32 v29, 4, v{vG}
v_add_u32 v29, {L_CSQ + 320}, v29""")
    for T in range(2):
        e.ds(f"ds_read_b128 {v(NM + 4 * T, 4)}, v26 offset:{64 * T}")
        e.ds(f"ds_read_b128 {v(RS + 4 * T, 4)}, v26 offset:{128 + 64 * T}")
        e.ds(f"ds_read_b32 v{NMT + T}, v27 offset:{64 * T}")
        e.ds(f"ds_read_b32 v{RST + T}, v27 offset:{128 + 64 * T}")
    for b in range(5): e.ds(f"ds_read_b32 v{CSK + b}, v28 offset:{64 * b}")
    e.wait_ds()
    for b in range(3): e.ds(f"ds_read_b128 {v(CSQ + 4 * b, 4)}, v29 offset:{64 * b}")
    e(f"v_lshlrev_b32 v30, 5, v0\ns_mov_b32 s65, {ws.FB}")
    frags, fill = [], {}
    for ks in range(20):
        for b in range(5):
            r, o = G.lds(lds_kv(ks) + 1024 * b)
            ms = [f"{MF} {v(ACC + (2 * b + T) * 4, 4)}, {a((2 * ks + T) * 4, 4)}, {{B}}, {'0' if ks == 0 else v(ACC + (2 * b + T) * 4, 4)}" for T in range(2)]
            frags.append((r, o, ("A", ks) if b == 0 else None, ms))
        if ks + D < 20: fill.setdefault(5 * ks + 1, []).append(AL[ks + D])
    fill.setdefault(5 * 17, []).append(lambda: e.vm(f"buffer_load_dword v31, v30, {W}, s65 offen sc1", "fb"))
    G.gemm(frags, RING, 10, fill)
    G.stamp(6)
    e(f"s_mov_b32 s60, {f2u(LOG2E):#x}")
    for j in range(8): e(f"v_mul_f32 v{RL + j}, s60, v{RS + j}")
    for j in range(2): e(f"v_mul_f32 v{RLT + j}, s60, v{RST + j}")
    e(f"v_cmp_gt_u32 s[66:67], 8, v{vC}")
    acc = lambda b, T, h: ACC + (2 * b + T) * 4 + 2 * h
    for b in range(5):
        for T in range(2):
            for h in range(2): pk(e, "fma", acc(b, T, h), [("p", NM + 4 * T + 2 * h), ("b", CSK + b), ("p", acc(b, T, h))])
    items = []
    for b in range(3):
        for T in range(2):
            for h in range(2):
                dst = OP + 4 * b + 2 * T + h
                if b == 2:
                    def dst(u, T=T, h=h, d=dst):
                        pk(e, "mul", u + 2, [("p", acc(2, T, h)), ("p", RS + 4 * T + 2 * h)])
                        e(f"v_cndmask_b32 v{u}, v{u + 2}, v{u}, s[66:67]\nv_cndmask_b32 v{u + 1}, v{u + 3}, v{u + 1}, s[66:67]")
                        e(f"v_cvt_pk_bf16_f32 v{d}, v{u}, v{u + 1}")
                items.append((acc(b, T, h), ("p", RS + 4 * T + 2 * h), ("p", RL + 4 * T + 2 * h), dst))
    phi(e, items, T0)
    for b in (3, 4):
        for T in range(2):
            for h in range(2):
                pk(e, "mul", acc(b, T, h), [("p", acc(b, T, h)), ("p", RS + 4 * T + 2 * h)])
                e(f"v_cvt_pk_bf16_f32 v{OP + 4 * b + 2 * T + h}, v{acc(b, T, h)}, v{acc(b, T, h) + 1}")
    okb = e.newlabel("fbok")
    e.wait_vm("fb")
    e(f"v_cmp_eq_u32 vcc, 1, v31\ns_cmp_eq_u64 vcc, exec\ns_cbranch_scc1 {okb}")
    q = list(e.vmq)
    G.poll(30, "s65", "-1", False)
    e.label(okb)
    e.vmq = q
    e(f"s_mul_i32 s60, s{sW}, 5120\nv_add_u32 v26, s60, v{vL0}\ns_barrier")
    for b in range(5): e.ds(f"ds_write_b128 v26, {v(OP + 4 * b, 4)} offset:{1024 * b}")
    e(f"""s_add_u32 s68, s{sW}, 1
s_lshr_b32 s68, s68, 1
s_lshl_b32 s60, s{sW}, 2
s_lshr_b32 s69, 0x3422, s60
s_and_b32 s69, s69, 15
s_lshr_b32 s70, 0x4433, s60
s_and_b32 s70, s70, 15
s_lshl_b32 s60, s68, 10
v_add_u32 v26, s60, v{vL0}
s_lshl_b32 s60, s69, 10
v_add_u32 v27, s60, v{vL0}
s_lshl_b32 s60, s70, 10
v_add_u32 v28, s60, v{vL0}""")
    for j in range(4): e(f"v_mov_b32 v{T0 + j}, 0x3f803f80")
    e.wait_ds()
    e("s_barrier")
    for sw in range(4):
        for i in range(3): e.ds(f"ds_read_b128 {v(40 + 12 * sw + 4 * i, 4)}, v{26 + i} offset:{5120 * sw}", ("ex", sw))
    e(f"""s_lshl_b32 s60, s68, 4
v_lshl_add_u32 v29, v{vG}, 2, s60
v_cmp_le_u32 vcc, 20, v29
v_cndmask_b32 v30, 0, 1, vcc
v_mul_u32_u24 v31, 1600, v30
v_lshl_add_u32 v31, v29, 2, v31
v_cmp_gt_u32 s[72:73], 40, v29
v_mov_b32 v36, {OOB:#x}""")
    for i, sv in enumerate((69, 70)):
        e(f"""s_lshl_b32 s60, s{sv}, 4
s_sub_u32 s60, s60, 40
v_add_u32 v32, s60, v{vC}
v_mul_u32_u24 v33, 20, v30
v_sub_u32 v32, v32, v33
v_cmp_gt_u32 vcc, 20, v32
s_and_b64 vcc, vcc, s[72:73]
v_mul_u32_u24 v32, 80, v32
v_add_u32 v32, v32, v31
v_cndmask_b32 v{33 + i}, v36, v32, vcc""".replace("v33, 20, v30", "v35, 20, v30").replace("v32, v32, v33", "v32, v32, v35"))
    e(f"""v_cmp_eq_u32 vcc, 0, v{vC}
s_and_b64 vcc, vcc, s[72:73]
v_add_u32 v32, 1600, v31
v_cndmask_b32 v35, v36, v32, vcc
s_lshl_b32 s71, s{sCG}, 4
s_mul_i32 s71, s71, {KV_REC}
s_add_u32 s71, s71, s{sKoff}
s_add_u32 s71, s71, {ws.KVP}
s_lshl_b32 s60, s{sX}, 1
s_add_u32 s60, s60, s{sRB}
s_mul_i32 s60, s60, {KV_REC}
s_add_u32 s61, s60, s71""")
    for sw in range(4):
        e.wait_ds(("ex", sw))
        for i in range(3):
            B = v(40 + 12 * sw + 4 * (i + 1), 4) if i < 2 else v(T0, 4)
            e(f"{MF} {v(240 + 4 * i, 4)}, {v(40 + 12 * sw, 4)}, {B}, {'0' if sw == 0 else v(240 + 4 * i, 4)}")
    for i in range(3): e.vm(f"buffer_store_dwordx4 {v(240 + 4 * i, 4)}, v{33 + i}, {W}, s61 offen sc1")
    G.stamp(7)
    e(f"""v_lshlrev_b32 v26, 2, v0
v_cmp_gt_u32 vcc, 96, v0
v_cndmask_b32 v27, v36, v26, vcc
s_mul_i32 s60, s{sCG}, 3840
s_add_u32 s60, s60, {ws.CS_IN}""")
    for j in range(10): e.vm(f"buffer_load_dword v{40 + j}, v27, {W}, s60 offen offset:{384 * j} sc1", "csi")
    e(f"""v_lshlrev_b32 v27, 4, v0
v_cmp_gt_u32 vcc, 210, v0
v_cndmask_b32 v37, v36, v27, vcc
v_lshrrev_b32 v28, 2, v{vC}
v_lshlrev_b32 v28, 1, v28
v_and_b32 v29, 1, v{vC}
v_add_u32 v28, v28, v29
v_lshl_add_u32 v28, v{vG}, 3, v28
v_lshlrev_b32 v28, 4, v28
v_add_u32 v38, 0x10000, v28""")
    def gat(j):
        e(f"s_add_u32 s60, s71, {j * KV_REC}")
        e.vm(f"buffer_load_dwordx4 {v(T0 + 4 * j, 4)}, v37, {W}, s60 offen sc1", "sent")
    frags, fill = [], {}
    for ks in range(20):
        for b in range(3):
            r, o = G.lds(lds_q(ks) + 1024 * b)
            if b == 2: r = "v38"
            ms = [f"{MF} {v(QAC + (2 * b + T) * 4, 4)}, {{B}}, {a((2 * ks + T) * 4, 4)}, {'0' if ks == 0 else v(QAC + (2 * b + T) * 4, 4)}" for T in range(2)]
            frags.append((r, o, None, ms))
    G.spread(fill, G.dma(sTO, 0, 122880, 30) + G.dma(sTO, 51200, 20480, 50), 0, 38 / 21)
    G.spread(fill, [lambda j=j: gat(j) for j in range(16)], 40, 20 / 16)
    G.gemm(frags, RING, 10, fill)
    G.stamp(8)
    PQ = 64
    qa = lambda T, m: QAC + (2 * (m >> 1) + T) * 4 + 2 * (m & 1)
    for T in range(2):
        for m in range(5): pk(e, "fma", qa(T, m), [("p", CSQ + 2 * m), ("b", NMT + T), ("p", qa(T, m))])
    phi(e, [(qa(T, m), ("b", RST + T), ("b", RLT + T), PQ + 6 * T + m) for T in range(2) for m in range(5)], 52)
    e(f"v_mov_b32 v{PQ + 5}, 0\nv_mov_b32 v{PQ + 11}, 0")
    e.wait_vm("csi")
    for j in range(1, 10): e(f"v_add_f32 v40, v40, v{40 + j}")
    e(f"v_add_u32 v26, {L_CSI}, v26\nv_cmp_gt_u32 vcc, 96, v0\ns_and_b64 exec, exec, vcc")
    e.ds("ds_write_b32 v26, v40")
    e("s_mov_b64 exec, -1")
    sentinel_retry(G, lambda: [gat(j) for j in range(16)], [T0 + j for j in range(64)], 41)
    G.stamp(9)
    for st in (32, 16, 8, 4):
        for j in range(0, st, 2): pk(e, "add", T0 + j, [("p", T0 + j), ("p", T0 + st + j)])
    e(f"v_add_u32 v27, {L_KVT}, v27")
    e.ds(f"ds_write_b128 v27, {v(T0, 4)}")
    e(f"""v_lshrrev_b32 v26, 2, v{vC}
v_and_b32 v27, 3, v{vC}
v_mad_u32_u24 v28, v26, 5, v27
v_mad_u32_u24 v29, v26, 5, 4
v_cmp_eq_u32 vcc, 0, v27
v_cndmask_b32 v29, 20, v29, vcc
v_mul_u32_u24 v30, 20, v{vG}
v_add_u32 v30, {L_KVT}, v30
s_movk_i32 s60, 80
v_mad_u32_u24 v28, v28, s60, v30
v_mad_u32_u24 v29, v29, s60, v30""")
    e.wait_ds()
    e("s_barrier")
    KW, KF = 104, 128
    for h in range(2):
        for m in range(2):
            d = KW + 6 * (2 * h + m)
            e.ds(f"ds_read2_b32 {v(d, 2)}, v{28 + m} offset0:{0} offset1:{1}".replace("v%d offset0" % (28 + m), "v%d offset0" % (28 + m + 2 * h + (2 if h else 0))))
            e.ds(f"ds_read2_b32 {v(d + 2, 2)}, v{28 + m + (4 if h else 0)} offset0:2 offset1:3")
            e.ds(f"ds_read_b32 v{d + 4}, v{28 + m + (4 if h else 0)} offset:16", ("kw", h, m))
        if h == 0: e("v_add_u32 v32, 1680, v28\nv_add_u32 v33, 1680, v29")
    for h in range(2):
        for m in range(2):
            d = KW + 6 * (2 * h + m); f = KF + 4 * (2 * h + m)
            e.wait_ds(("kw", h, m))
            if h == 0:
                e(f"v_cvt_pk_bf16_f32 v{f}, v{d}, v{d + 1}\nv_cvt_pk_bf16_f32 v{f + 1}, v{d + 2}, v{d + 3}\nv_cvt_pk_bf16_f32 v{f + 2}, v{d + 4}, 0\nv_mov_b32 v{f + 3}, 0")
            else:
                e(f"v_cvt_pk_bf16_f32 v{f}, 0, v{d}\nv_cvt_pk_bf16_f32 v{f + 1}, v{d + 1}, v{d + 2}\nv_cvt_pk_bf16_f32 v{f + 2}, v{d + 3}, v{d + 4}\nv_mov_b32 v{f + 3}, 0")
    ON = 192
    on = lambda T, h, m: ON + ((2 * T + h) * 2 + m) * 4
    for T in range(2):
        for h in range(2):
            for m in range(2): e(f"{MF} {v(on(T, h, m), 4)}, {v(KF + 4 * (2 * h + m), 4)}, {v(PQ + 6 * T + 2 * h, 4)}, 0")
    e(f"""s_mul_i32 s60, s{sCG}, 5
v_add_u32 v26, s60, v{vG}
v_lshlrev_b32 v26, 8, v26
v_lshl_add_u32 v26, v{vC}, 4, v26
s_add_u32 s60, s60, 4
s_lshl_b32 s60, s60, 8
v_lshl_add_u32 v27, v{vC}, 4, s60
v_lshl_add_u32 v27, v{vG}, 2, v27
s_mul_i32 s62, s{sRT1}, 20480
s_add_u32 s62, s62, s{sLoff}
s_add_u32 s62, s62, {ws.O}""")
    for T in range(2):
        for h in range(2): e(f"v_add_f32 v{on(T, h, 1) + 1}, v{vC1E + 1}, v{on(T, h, 1) + 1}")
    for T in range(2):
        for h in range(2): e(f"v_rcp_f32 v{on(T, h, 1) + 1}, v{on(T, h, 1) + 1}")
    for T in range(2):
        for h in range(2):
            for p in range(2): pk(e, "mul", on(T, h, 0) + 2 * p, [("p", on(T, h, 0) + 2 * p), ("b", on(T, h, 1) + 1)])
            e(f"v_mul_f32 v{on(T, h, 1)}, v{on(T, h, 1)}, v{on(T, h, 1) + 1}")
        o = 40 + 6 * T
        x0, x1, y0, y1 = on(T, 0, 0), on(T, 0, 1), on(T, 1, 0), on(T, 1, 1)
        e(f"""v_cvt_pk_bf16_f32 v{o}, v{x0}, v{x0 + 1}
v_cvt_pk_bf16_f32 v{o + 1}, v{x0 + 2}, v{x0 + 3}
v_cvt_pk_bf16_f32 v{o + 2}, v{x1}, v{y0}
v_cvt_pk_bf16_f32 v{o + 3}, v{y0 + 1}, v{y0 + 2}
v_cvt_pk_bf16_f32 v{o + 4}, v{y0 + 3}, v{y1}
s_add_u32 s60, s62, {20480 * T}""")
        e.vm(f"buffer_store_dwordx4 {v(o, 4)}, v26, {W}, s60 offen", "ost")
        e.vm(f"buffer_store_dword v{o + 4}, v27, {W}, s60 offen", "ost")
    steps = G.dma(sTO, 30720, 0, 20) + G.dma(sTI, 0, 71680, 48)
    for st in steps[:7]: st()
    e.wait_vm("ost")
    e(f"""s_lshl_b32 s63, s{sX}, 1
s_add_u32 s63, s63, s{sRB}
s_lshl_b32 s63, s63, 2
s_add_u32 s63, s63, s{sW}
s_lshl_b32 s63, s63, 4
s_add_u32 s63, s63, s{sCG}
s_lshl_b32 s63, s63, 2
s_add_u32 s63, s63, s{sFoff}
s_add_u32 s63, s63, {ws.F_O}""")
    G.flag("s63", True)
    G.stamp(10)
    for st in steps[7:]: st()

def proj(G, second):
    e, ws = G.e, G.ws
    nks = 24 if second else 20
    ACC, RING = 40, 104
    if second:
        e(f"s_lshl_b32 s63, s{sX}, 2\ns_add_u32 s63, s63, s{sRQ}\ns_lshl_b32 s63, s63, 1")
    else:
        e(f"s_lshl_b32 s63, s{sX}, 2\ns_add_u32 s63, s63, s{sRQ}\ns_lshl_b32 s63, s63, 1")
    e(f"""s_lshr_b32 s60, s{sW}, 1
s_add_u32 s63, s63, s60
s_lshl_b32 s63, s63, 6
s_add_u32 s63, s63, s{sFoff}
s_add_u32 s63, s63, {ws.F_U if second else ws.F_O}
v_lshlrev_b32 v26, 2, v{vLane}
s_mul_i32 s64, s{sRT2}, {nks * 1024}
s_add_u32 s64, s64, s{sLoff}
s_add_u32 s64, s64, {ws.U if second else ws.O}""")
    for j in range(10):
        e(f"v_lshlrev_b32 v{ACC + 2 * j}, 16, v{vXR + j}\nv_and_b32 v{ACC + 2 * j + 1}, 0xffff0000, v{vXR + j}")
    G.poll(26, "s63", "0xffff", True)
    G.stamp(20 if second else 11)
    AL = a_loads(G, 64, vL0, 1, nks, 0)
    D = 8
    for ks in range(D): AL[ks]()
    e("s_barrier")
    frags, fill = [], {}
    for ks in range(nks):
        for b in range(5):
            r, o = G.lds((lds_out(ks) if second else lds_kv(ks)) + 1024 * b)
            frags.append((r, o, ("A", ks) if b == 0 else None, [f"{MF} {v(ACC + 4 * b, 4)}, {{B}}, {a(4 * ks, 4)}, {v(ACC + 4 * b, 4)}"]))
        if ks + D < nks: fill.setdefault(5 * ks + 1, []).append(AL[ks + D])
    G.gemm(frags, RING, 12, fill)
    G.stamp(21 if second else 12)
    for j in range(10): e(f"v_cvt_pk_bf16_f32 v{vXR + j}, v{ACC + 2 * j}, v{ACC + 2 * j + 1}")
    if second:
        mid = e.newlabel("notlast")
        e(f"""s_cmp_eq_u32 s{sLay}, 1
s_cbranch_scc0 {mid}
s_mul_i32 s60, s{sRT2}, 20480
s_mul_i32 s61, s{sCT}, 160
s_add_u32 s60, s60, s61
v_mul_u32_u24 v26, 1280, v{vC}
v_lshl_add_u32 v27, v{vG}, 3, v26
v_lshl_add_u32 v26, v{vG}, 4, v26
buffer_store_dwordx4 {v(vXR, 4)}, v26, s[{OUTR}:{OUTR+3}], s60 offen
buffer_store_dwordx4 {v(vXR + 4, 4)}, v26, s[{OUTR}:{OUTR+3}], s60 offen offset:64
buffer_store_dwordx2 {v(vXR + 8, 2)}, v27, s[{OUTR}:{OUTR+3}], s60 offen offset:128
s_branch LFIN""")
        e.label(mid)
    nxt = ws.LSTR if second else 0
    e(f"s_mul_i32 s60, s{sRT2}, 20480\ns_add_u32 s60, s60, s{sLoff}\ns_add_u32 s60, s60, {(ws.X0 if second else ws.X1) + nxt}")
    e.vm(f"buffer_store_dwordx4 {v(vXR, 4)}, v{vXa}, {W}, s60 offen", "xst")
    e.vm(f"buffer_store_dwordx4 {v(vXR + 4, 4)}, v{vXa}, {W}, s60 offen offset:1024", "xst")
    e.vm(f"buffer_store_dwordx2 {v(vXR + 8, 2)}, v{vXb}, {W}, s60 offen", "xst")
    pk(e, "mul", 62, [("p", ACC), ("p", ACC)])
    pk(e, "add", 60, [("p", ACC), ("p", ACC + 2)])
    for j in range(1, 10):
        pk(e, "fma", 62, [("p", ACC + 2 * j), ("p", ACC + 2 * j), ("p", 62)])
        if j > 1: pk(e, "add", 60, [("p", 60), ("p", ACC + 2 * j)])
    e(f"""v_add_f32 v60, v60, v61
v_add_f32 v62, v62, v63
v_permlane16_swap_b32 v60, v62
v_add_f32 v60, v60, v62
v_mov_b32 v62, v60
v_permlane32_swap_b32 v60, v62
v_add_f32 v60, v60, v62
s_lshl_b32 s60, s{sRT2}, 10
s_lshl_b32 s61, s{sCT}, 7
s_add_u32 s60, s60, s61
s_add_u32 s60, s60, s{sLoff}
s_add_u32 s60, s60, {(ws.ST0 if second else ws.ST1) + nxt}
v_lshlrev_b32 v26, 2, v{vLane}
s_mov_b32 exec_lo, -1
s_mov_b32 exec_hi, 0""")
    e.vm(f"buffer_store_dword v60, v26, {W}, s60 offen", "xst")
    e("s_mov_b64 exec, -1\ns_barrier")
    steps = G.dma(sTQ, 30720, 0, 120) if second else G.dma(sTI, 49152, 122880, 12) + G.dma(sTI, 61440, 0, 60)
    for st in steps[:7]: st()
    e.wait_vm("xst")
    e(f"""s_lshl_b32 s63, s{sX}, 2
s_add_u32 s63, s63, s{sRQ}
s_lshl_b32 s63, s63, 1
s_lshr_b32 s60, s{sW}, 1
s_add_u32 s63, s63, s60
s_lshl_b32 s63, s63, 3
s_add_u32 s63, s63, s{sCT}
s_lshl_b32 s63, s63, 1
s_and_b32 s60, s{sW}, 1
s_add_u32 s63, s63, s60
s_lshl_b32 s63, s63, 2
s_add_u32 s63, s63, {ws.F_X2 if second else ws.F_X1}""")
    if not second: e(f"s_add_u32 s63, s63, s{sFoff}")
    G.flag("s63", True)
    G.stamp(22 if second else 13)
    for st in steps[7:]: st()

def p3(G):
    e, ws = G.e, G.ws
    Z2, Z1, RING = 40, 64, 104
    NM, RS, CS2, NMT, RST, CS1, T0 = 144, 152, 160, 164, 166, 168, 192
    e(f"""s_lshl_b32 s63, s{sX}, 3
s_lshl_b32 s60, s{sRB}, 2
s_add_u32 s63, s63, s60
s_add_u32 s63, s63, s{sW}
s_lshl_b32 s63, s63, 6
s_add_u32 s63, s63, s{sFoff}
s_add_u32 s63, s63, {ws.F_X1}
v_lshlrev_b32 v26, 2, v{vLane}
v_lshrrev_b32 v27, 3, v{vC}
v_bfe_u32 v28, v{vC}, 2, 1
v_and_b32 v29, 3, v{vC}
v_lshl_add_u32 v29, v28, 3, v29
v_lshlrev_b32 v38, 4, v29
v_mul_u32_u24 v30, 20480, v27
v_lshl_add_u32 v30, v{vG}, 8, v30
v_add_u32 v30, v30, v38
v_lshl_add_u32 v39, v27, 4, v29
s_lshl_b32 s62, s{sRT1}, 10
s_add_u32 s62, s62, s{sLoff}
s_add_u32 s62, s62, {ws.ST1}
s_mul_i32 s64, s{sRT1}, 20480
s_add_u32 s64, s64, s{sLoff}
s_add_u32 s64, s64, {ws.X1}""")
    G.poll(26, "s63", "0xffff", True)
    G.stamp(14)
    e.vm(f"buffer_load_dwordx4 {v(T0, 4)}, v{vL0}, {W}, s62 offen sc1", "st")
    e.vm(f"buffer_load_dwordx4 {v(T0 + 4, 4)}, v{vL0}, {W}, s62 offen offset:1024 sc1", "st")
    AL = a_loads(G, 64, 30, 2, 20, 0, 64)
    D = 4
    for ks in range(D): AL[ks]()
    e("s_barrier")
    e.wait_vm("st")
    G.row_stats(T0, T0 + 4, T0 + 8)
    e(f"""s_lshl_b32 s60, s{sW}, 8
s_add_u32 s65, s60, {L_ST}
v_lshl_add_u32 v26, v{vG}, 5, s65
v_lshl_add_u32 v31, v39, 2, s65
v_lshlrev_b32 v28, 2, v{vC}
v_add_u32 v28, {L_CSI}, v28
v_lshlrev_b32 v29, 4, v{vG}
v_add_u32 v29, {L_CSI + 192}, v29""")
    for T in range(2):
        e.ds(f"ds_read_b128 {v(NM + 4 * T, 4)}, v26 offset:{16 * T}")
        e.ds(f"ds_read_b128 {v(RS + 4 * T, 4)}, v26 offset:{128 + 16 * T}")
        e.ds(f"ds_read_b32 v{NMT + T}, v31 offset:{16 * T}")
        e.ds(f"ds_read_b32 v{RST + T}, v31 offset:{128 + 16 * T}")
    for b in range(3): e.ds(f"ds_read_b32 v{CS2 + b}, v28 offset:{64 * b}")
    for b in range(3): e.ds(f"ds_read_b128 {v(CS1 + 4 * b, 4)}, v29 offset:{64 * b}")
    e.wait_ds()
    frags, fill = [], {}
    for ks in range(20):
        for b in range(3):
            r, o = G.lds(lds_z2(ks) + 1024 * b)
            ms = [f"{MF} {v(Z2 + (2 * b + T) * 4, 4)}, {a((2 * ks + T) * 4, 4)}, {{B}}, {'0' if ks == 0 else v(Z2 + (2 * b + T) * 4, 4)}" for T in range(2)]
            frags.append((r, o, ("A", ks) if b == 0 else None, ms))
        if ks + D < 20: fill.setdefault(3 * ks + 1, []).append(AL[ks + D])
    G.gemm(frags, RING, 10, fill)
    G.stamp(15)
    z2 = lambda b, T, h: Z2 + (2 * b + T) * 4 + 2 * h
    idx = [(b, T, h) for b in range(3) for T in range(2) for h in range(2)]
    for b, T, h in idx: pk(e, "fma", z2(b, T, h), [("p", NM + 4 * T + 2 * h), ("b", CS2 + b), ("p", z2(b, T, h))])
    gelu(e, [(z2(b, T, h), ("p", RS + 4 * T + 2 * h)) for b, T, h in idx], T0)
    S, Q, O8 = T0, T0 + 8, T0 + 16
    for T in range(2):
        for h in range(2):
            j = 4 * T + 2 * h
            pk(e, "add", S + j, [("p", z2(0, T, h)), ("p", z2(1, T, h))])
            pk(e, "mul", Q + j, [("p", z2(0, T, h)), ("p", z2(0, T, h))])
            pk(e, "add", S + j, [("p", S + j), ("p", z2(2, T, h))])
            pk(e, "fma", Q + j, [("p", z2(1, T, h)), ("p", z2(1, T, h)), ("p", Q + j)])
            pk(e, "fma", Q + j, [("p", z2(2, T, h)), ("p", z2(2, T, h)), ("p", Q + j)])
    for j in range(8): e(f"v_add_f32_dpp v{O8 + j}, v{S + j}, v{S + j} row_ror:8 row_mask:0xf bank_mask:0x3")
    for j in range(8): e(f"v_add_f32_dpp v{O8 + j}, v{Q + j}, v{Q + j} row_ror:8 row_mask:0xf bank_mask:0xc")
    for j in range(4): e(f"v_add_f32_dpp v{S + j}, v{O8 + j}, v{O8 + j} row_half_mirror row_mask:0xf bank_mask:0x5")
    for j in range(4): e(f"v_add_f32_dpp v{S + j}, v{O8 + 4 + j}, v{O8 + 4 + j} row_half_mirror row_mask:0xf bank_mask:0xa")
    for j in range(4): e(f"v_add_f32_dpp v{S + j}, v{S + j}, v{S + j} quad_perm:[1,0,3,2] row_mask:0xf bank_mask:0xf")
    for j in range(4): e(f"v_add_f32_dpp v{S + j}, v{S + j}, v{S + j} quad_perm:[2,3,0,1] row_mask:0xf bank_mask:0xf")
    fast, done = e.newlabel("s3f"), e.newlabel("s3d")
    e(f"""v_lshrrev_b32 v26, 3, v{vC}
v_lshlrev_b32 v26, 7, v26
v_lshl_add_u32 v26, v{vG}, 5, v26
v_bfe_u32 v27, v{vC}, 2, 1
v_lshl_add_u32 v26, v27, 4, v26
s_lshr_b32 s66, s{sRT1}, 1
s_lshl_b32 s66, s66, 12
s_add_u32 s66, s66, s{sSoff}
s_add_u32 s66, s66, {ws.S3}
s_lshl_b32 s60, s{sCG}, 8
s_add_u32 s60, s60, s66
s_mov_b32 exec_lo, 0x11111111
s_mov_b32 exec_hi, 0x11111111
s_cmp_eq_u32 s{sMode}, 0
s_cbranch_scc1 {fast}
buffer_store_dwordx4 {v(S, 4)}, v26, {W}, s60 offen sc1
s_branch {done}""")
    e.label(fast)
    e.vm(f"buffer_store_dwordx4 {v(S, 4)}, v26, {W}, s60 offen")
    e.label(done)
    e("s_mov_b64 exec, -1")
    G.stamp(16)
    GS = 208
    def gat():
        for m in range(4): e.vm(f"buffer_load_dwordx4 {v(GS + 4 * m, 4)}, v{vL0}, {W}, s66 offen offset:{1024 * m} sc1", "sent")
    frags, fill = [], {}
    for ks in range(20):
        for b in range(3):
            r, o = G.lds(lds_z1(ks) + 1024 * b)
            ms = [f"{MF} {v(Z1 + (2 * b + T) * 4, 4)}, {{B}}, {a((2 * ks + T) * 4, 4)}, {'0' if ks == 0 else v(Z1 + (2 * b + T) * 4, 4)}" for T in range(2)]
            frags.append((r, o, None, ms))
    fill[45] = [gat]
    G.gemm(frags, RING, 10, fill)
    e("s_barrier")
    G.stamp(17)
    for m in range(4):
        e(f"""v_add_u32 v26, {4 * m}, v{vG}
v_xor_b32 v26, v26, v{vC}
v_lshlrev_b32 v26, 4, v26
v_lshl_add_u32 v{100 + m}, v{vG}, 12, v26""")
    e(f"""s_lshl_b32 s67, s{sX}, 2
s_add_u32 s67, s67, s{sRQ}
s_lshl_b32 s67, s67, 1
s_and_b32 s60, s{sW}, 1
s_add_u32 s68, s67, s60
s_xor_b32 s69, s68, 1
s_lshl_b32 s68, s68, 17
s_lshl_b32 s69, s69, 17
s_lshl_b32 s60, s{sW}, 10
s_add_u32 s68, s68, s60
s_add_u32 s69, s69, s60
s_lshl_b32 s70, s{sW}, 15""")
    def wsp(sb):
        out = []
        for st in range(4):
            for m in range(8):
                def f(st=st, m=m):
                    e(f"s_add_u32 s60, s{sb}, {m * 16384 + st * 256}\ns_add_u32 m0, s70, {st * 8192 + m * 1024}")
                    e.vm(f"buffer_load_dwordx4 v{100 + (m & 3)}, s[{WSPR}:{WSPR+3}], s60 offen lds", "wsp")
                out.append(f)
        return out
    r1 = wsp(68)
    z1 = lambda b, T, h: Z1 + (2 * b + T) * 4 + 2 * h
    for b, T, h in idx: pk(e, "fma", z1(b, T, h), [("p", CS1 + 4 * b + 2 * h), ("b", NMT + T), ("p", z1(b, T, h))])
    its = [(z1(b, T, h), ("b", RST + T)) for b, T, h in idx]
    for i in range(0, 12, 2):
        gelu(e, its[i:i + 2], T0)
        r1[i](); r1[i + 1]()
    e(f"""v_lshrrev_b32 v27, 3, v{vC}
v_mul_u32_u24 v27, 24576, v27
v_add_u32 v27, v27, v38
s_mul_i32 s60, s{sCG}, 6
v_add_u32 v26, s60, v{vG}
v_lshl_add_u32 v26, v26, 8, v27
v_lshrrev_b32 v28, 1, v{vG}
v_add3_u32 v28, v28, s60, 4
v_lshl_add_u32 v27, v28, 8, v27
v_and_b32 v28, 1, v{vG}
v_lshl_add_u32 v27, v28, 3, v27
s_mul_i32 s61, s{sRT1}, 24576
s_add_u32 s61, s61, s{sLoff}
s_add_u32 s61, s61, {ws.Z1}""")
    for T in range(2):
        o = T0 + 6 * T
        for b in range(3):
            for h in range(2): e(f"v_cvt_pk_bf16_f32 v{o + 2 * b + h}, v{z1(b, T, h)}, v{z1(b, T, h) + 1}")
        e.vm(f"buffer_store_dwordx4 {v(o, 4)}, v26, {W}, s61 offen offset:{64 * T}", "zst")
        e.vm(f"buffer_store_dwordx2 {v(o + 4, 2)}, v27, {W}, s61 offen offset:{64 * T}", "zst")
    sentinel_retry(G, gat, [GS + j for j in range(16)], 64)
    for h in range(2):
        pk(e, "add", GS + 2 * h, [("p", GS + 2 * h), ("p", GS + 4 + 2 * h)])
        pk(e, "add", GS + 8 + 2 * h, [("p", GS + 8 + 2 * h), ("p", GS + 12 + 2 * h)])
    for h in range(2): pk(e, "add", GS + 2 * h, [("p", GS + 2 * h), ("p", GS + 8 + 2 * h)])
    G.xreduce([GS + j for j in range(4)], GS + 4)
    for j in range(4): e(f"v_mov_b32_dpp v{GS + 4 + j}, v{GS + j} row_ror:8 row_mask:0xf bank_mask:0xf")
    e(f"s_mov_b32 s60, {f2u(-1.0 / 768):#x}\ns_mov_b32 s61, {f2u(1.0 / 768):#x}")
    for j in range(4): e(f"v_mul_f32 v{GS + j}, s60, v{GS + j}")
    for j in range(4): e(f"v_mul_f32 v{GS + 8 + j}, v{GS + j}, v{GS + j}")
    for j in range(4): e(f"v_fma_f32 v{GS + 4 + j}, v{GS + 4 + j}, s61, -v{GS + 8 + j}")
    for j in range(4): e(f"v_max_f32 v{GS + 4 + j}, 0, v{GS + 4 + j}")
    for j in range(4): e(f"v_add_f32 v{GS + 4 + j}, {f2u(1e-5):#x}, v{GS + 4 + j}")
    for j in range(4): e(f"v_rsq_f32 v{GS + 4 + j}, v{GS + 4 + j}")
    for j in range(4): e(f"v_mul_f32 v{GS + j}, v{GS + j}, v{GS + 4 + j}")
    e(f"v_add_u32 v26, s65, v{vL0}\nv_lshl_add_u32 v28, v{vG}, 5, s65\ns_mov_b64 exec, 0xff")
    e.ds(f"ds_write_b128 v26, {v(GS, 4)}")
    e.ds(f"ds_write_b128 v26, {v(GS + 4, 4)} offset:128")
    e("s_mov_b64 exec, -1")
    e.wait_ds()
    for T in range(2):
        e.ds(f"ds_read_b128 {v(NM + 4 * T, 4)}, v28 offset:{16 * T}")
        e.ds(f"ds_read_b128 {v(RS + 4 * T, 4)}, v28 offset:{128 + 16 * T}")
    e(f"""v_lshrrev_b32 v26, 1, v{vG}
v_mul_u32_u24 v26, 3072, v26
v_and_b32 v27, 1, v{vG}
v_lshl_add_u32 v26, v27, 9, v26
v_lshl_add_u32 v26, v{vC}, 4, v26
s_lshr_b32 s61, s{sCG}, 1
s_lshl_b32 s61, s61, 7
s_add_u32 s61, s61, s{sRT1}
s_mul_i32 s61, s61, 3072
s_add_u32 s61, s61, s{sLoff}
s_add_u32 s61, s61, {ws.ZT}
s_and_b32 s62, s{sCG}, 1
s_mul_i32 s62, s62, 3""")
    e.wait_ds()
    for b in range(3):
        o = 64 + 4 * b
        for T in range(2):
            for h in range(2):
                pk(e, "fma", z2(b, T, h), [("p", z2(b, T, h)), ("p", RS + 4 * T + 2 * h), ("p", NM + 4 * T + 2 * h)])
        for T in range(2):
            for h in range(2): e(f"v_cvt_pk_bf16_f32 v{o + 2 * T + h}, v{z2(b, T, h)}, v{z2(b, T, h) + 1}")
        e(f"""s_add_u32 s60, s62, {b}
s_lshr_b32 s71, s60, 1
s_lshl_b32 s71, s71, 10
s_and_b32 s60, s60, 1
s_lshl_b32 s60, s60, 8
s_add_u32 s60, s60, s71
s_add_u32 s60, s60, s61""")
        e.vm(f"buffer_store_dwordx4 {v(o, 4)}, v26, {W}, s60 offen sc1", "zst")
    for st in r1[12:24]: st()
    e.wait_vm("zst")
    sk = e.newlabel("nowb")
    e(f"s_cmp_eq_u32 s{sMode}, 0\ns_cbranch_scc1 {sk}\nbuffer_wbl2 sc1\ns_waitcnt vmcnt(0)")
    e.label(sk)
    e(f"""s_barrier
s_lshl_b32 s63, s{sX}, 5
s_add_u32 s63, s63, s{sL}
s_lshl_b32 s63, s63, 7
s_add_u32 s63, s63, s{sFoff}
s_add_u32 s63, s63, {ws.F_Z}
s_cmp_eq_u32 s{sW}, 0
s_cselect_b32 s63, s63, {OOB:#x}""")
    G.flag("s63", False)
    G.stamp(18)
    for st in r1[24:]: st()
    e(f"""v_and_b32 v26, 31, v{vLane}
v_lshrrev_b32 v27, 5, v{vLane}
v_xor_b32 v27, v27, v{vC}
v_lshlrev_b32 v27, 4, v27
v_lshl_add_u32 v27, v26, 8, v27
v_add_u32 v152, s70, v27""")
    for j in range(1, 8): e(f"v_xor_b32 v{152 + j}, {32 * j}, v152")
    e.wait_vm("wsp")
    for ks in range(32):
        e.ds(f"ds_read_b128 {a(4 * ks, 4)}, v{152 + (ks & 7)} offset:{8192 * (ks >> 3)}")
        if len(e.lgq) >= 12: e.wait_ds();
    e.wait_ds()
    for st in wsp(69): st()

def p4(G):
    e, ws = G.e, G.ws
    ACC, WB, ZL, ZU, BI = 40, 136, 160, 172, 196
    acc = lambda fb, tb: ACC + (2 * fb + tb) * 16
    e(f"""v_lshrrev_b32 v26, 2, v{vLane}
s_lshl_b32 s60, s{sW}, 1
v_add_u32 v26, s60, v26
v_mov_b32 v27, s{sX}
v_cmp_gt_u32 vcc, 8, v{vLane}
v_cndmask_b32 v26, v27, v26, vcc
v_bfe_u32 v27, v{vLane}, 1, 1
s_lshr_b32 s60, s{sRQ}, 1
v_mov_b32 v28, s60
v_cndmask_b32 v27, v28, v27, vcc
v_lshlrev_b32 v26, 5, v26
v_lshl_add_u32 v26, v27, 4, v26
v_and_b32 v27, 1, v{vLane}
s_lshl_b32 s60, s{sCT}, 1
v_add3_u32 v26, v26, v27, s60
v_lshlrev_b32 v26, 7, v26
s_add_u32 s63, s{sFoff}, {ws.F_Z}
s_lshr_b32 s60, s{sW}, 1
s_lshl_b32 s60, s60, 8
v_xor_b32 v30, s60, v{vL0}
s_lshl_b32 s64, s{sCT}, 7
s_lshl_b32 s60, s{sW}, 5
s_add_u32 s64, s64, s60
s_mul_i32 s64, s64, 3072
s_add_u32 s64, s64, s{sLoff}
s_add_u32 s64, s64, {ws.ZT}
v_bfe_u32 v27, v{vLane}, 4, 1
v_mul_u32_u24 v31, 24576, v27
v_lshrrev_b32 v27, 5, v{vLane}
s_and_b32 s60, s{sW}, 2
v_add_u32 v27, s60, v27
v_lshl_add_u32 v31, v27, 8, v31
v_lshl_add_u32 v31, v{vC}, 4, v31
s_lshl_b32 s65, s{sX}, 2
s_add_u32 s65, s65, s{sRQ}
s_lshl_b32 s65, s65, 1
s_and_b32 s60, s{sW}, 1
s_add_u32 s65, s65, s60
s_lshl_b32 s66, s65, 6
s_mul_i32 s65, s65, 49152
s_mul_i32 s60, s{sCT}, 3072
s_add_u32 s65, s65, s60
s_add_u32 s65, s65, s{sLoff}
v_and_b32 v27, 31, v{vLane}
v_lshlrev_b32 v27, 1, v27""")
    G.poll(26, "s63", "0x3ff", True)
    G.stamp(19)
    D = 10
    def zl(ks):
        e(f"s_add_u32 s60, s64, {3072 * ks}")
        for fb in range(3):
            e.vm(f"buffer_load_dwordx4 {a(128 + ((ks % D) * 3 + fb) * 4, 4)}, v30, {W}, s60 offen offset:{1024 * fb} sc1", ("Z", ks))
    for ks in range(D - 1): zl(ks)
    def rd(ks): e.ds(f"ds_read_b128 {v(WB + 4 * (ks & 3), 4)}, v{152 + (ks & 7)} offset:{8192 * (ks >> 3)}", ("W", ks))
    for ks in range(3): rd(ks)
    def late():
        e(f"s_add_u32 s60, s65, {ws.Z1}")
        for fb in range(3): e.vm(f"buffer_load_dwordx4 {v(ZL + 4 * fb, 4)}, v31, {W}, s60 offen offset:{1024 * fb} sc1", "z1")
        e.vm(f"buffer_load_ushort v{BI}, v27, s[{BSPR}:{BSPR+3}], s66 offen", "z1")
    for ks in range(32):
        e.wait_vm(("Z", ks))
        for fb in range(3):
            z = a(128 + ((ks % D) * 3 + fb) * 4, 4)
            e(f"{MF32} {v(acc(fb, 0), 16)}, {z}, {a(4 * ks, 4)}, {'0' if ks == 0 else v(acc(fb, 0), 16)}")
            if fb == 0:
                if ks + D - 1 < 32: zl(ks + D - 1)
                if ks == 24: late()
                e.wait_ds(("W", ks))
            e(f"{MF32} {v(acc(fb, 1), 16)}, {z}, {v(WB + 4 * (ks & 3), 4)}, {'0' if ks == 0 else v(acc(fb, 1), 16)}")
        if ks + 3 < 32: rd(ks + 3)
    for rel in range(1, 4):
        e(f"s_xor_b32 s60, s{sW}, {rel}\ns_mul_i32 s60, s60, 18432\ns_add_u32 s60, s60, {L_RED + (rel - 1) * 6144}\nv_add_u32 v{32 + rel}, s60, v{vL0}")
    e(f"s_mul_i32 s60, s{sW}, 18432\ns_add_u32 s60, s60, {L_RED}\nv_add_u32 v32, s60, v{vL0}\ns_barrier")
    G.stamp(23)
    steps = G.dma(sTW, 0, 0, 75)
    k = 0
    for rel in range(1, 4):
        for fb in range(3):
            for hf in range(2):
                e.ds(f"ds_write_b128 v{32 + rel}, {v(acc(fb, rel & 1) + 8 * (rel >> 1) + 4 * hf, 4)} offset:{(2 * fb + hf) * 1024}")
            if k < 8: steps[k](); k += 1
        e.wait_ds()
    e.wait_vm("z1")
    for j in range(12):
        e(f"v_lshlrev_b32 v{ZU + 2 * j}, 16, v{ZL + j}\nv_and_b32 v{ZU + 2 * j + 1}, 0xffff0000, v{ZL + j}")
    e(f"v_lshlrev_b32 v{BI}, 16, v{BI}\ns_barrier")
    dst = lambda rel, n: (200 + 4 * n) if rel == 1 else (224 + 4 * n) if rel == 2 else (acc(0, 1) + 4 * n if n < 4 else acc(1, 1) + 4 * (n - 4))
    for rel in range(1, 4):
        for n in range(6): e.ds(f"ds_read_b128 {v(dst(rel, n), 4)}, v32 offset:{(rel - 1) * 6144 + n * 1024}", ("R", rel))
        if rel == 2: e.wait_ds(("R", 1))
    for rel in range(1, 4):
        e.wait_ds(("R", rel))
        for n in range(6):
            for h in range(2):
                d = acc(n >> 1, 0) + 4 * (n & 1) + 2 * h
                pk(e, "add", d, [("p", d), ("p", dst(rel, n) + 2 * h)])
    e(f"s_barrier\ns_add_u32 s61, s65, {ws.U}")
    for fb in range(3):
        for j in range(4):
            d = acc(fb, 0) + 2 * j
            pk(e, "add", d, [("p", d), ("b", BI)])
        for j in range(4):
            d = acc(fb, 0) + 2 * j
            pk(e, "mul", d, [("p", d), ("p", ZU + 8 * fb + 2 * j)])
        for j in range(4): e(f"v_cvt_pk_bf16_f32 v{200 + 4 * fb + j}, v{acc(fb, 0) + 2 * j}, v{acc(fb, 0) + 2 * j + 1}")
        e.vm(f"buffer_store_dwordx4 {v(200 + 4 * fb, 4)}, v31, {W}, s61 offen offset:{1024 * fb}", "ust")
    steps = steps[k:] + G.dma(sTW, 76800, 76800, 45) + G.dma(sTQ, 0, 122880, 30)
    for st in steps[:7]: st()
    e.wait_vm("ust")
    e(f"""s_lshl_b32 s63, s{sX}, 2
s_add_u32 s63, s63, s{sRQ}
s_lshl_b32 s63, s63, 1
s_and_b32 s60, s{sW}, 1
s_add_u32 s63, s63, s60
s_lshl_b32 s63, s63, 3
s_add_u32 s63, s63, s{sCT}
s_lshl_b32 s63, s63, 1
s_lshr_b32 s60, s{sW}, 1
s_add_u32 s63, s63, s60
s_lshl_b32 s63, s63, 2
s_add_u32 s63, s63, s{sFoff}
s_add_u32 s63, s63, {ws.F_U}""")
    G.flag("s63", True)
    G.stamp(24)
    for st in steps[7:]: st()

def body(G):
    e, ws = G.e, G.ws
    e("s_branch LP1_GO")
    p1(G)
    if G.finish(1): return
    proj(G, False)
    if G.finish(2): return
    p3(G)
    if G.finish(3): return
    p4(G)
    if G.finish(4): return
    proj(G, True)
    if G.finish(5): return
    e(f"""s_mov_b32 s{sLay}, 1
s_mov_b32 s{sLoff}, {ws.LSTR}
s_mov_b32 s{sFoff}, {ws.FLS}
s_mov_b32 s{sKoff}, {ws.KVP_L}
s_mov_b32 s{sSoff}, {ws.S3_L}""")
    if G.prof: e("s_lshl_b64 s[98:99], s[98:99], 30")
    e("s_branch LP1_WAIT")
```

```python
import sys, struct, math
from kemit import *
from layout import *

NAME = "interleave_layers__linear_attn_block__mixer_gmlp__prompt_kernel"
def f2u(x): return struct.unpack("<I", struct.pack("<f", x))[0]
LOG2E = 1.4426950408889634

WSR, XR_, QKVR, WOR, WINR, WSPR, BSPR, WOUTR, OUTR, DBGR = 4, 8, 12, 16, 20, 24, 28, 32, 36, 40
sW, sX, sL, sMode, sLay, sLoff, sFoff, sKoff, sSoff = range(44, 53)
sRB, sCG, sRQ, sCT, sRT1, sRT2, sXCC = range(53, 60)
sSrc, sDst, sSpin = 80, 81, 82
sTQ, sTO, sTI, sTW = 94, 95, 96, 97
vL0, vL1, vL2 = 1, 2, 3
vXR = 4
vPROF, vLane = 14, 15
vK01, vC1E = 16, 18
vXa, vXb, vG, vC = 20, 21, 22, 23
SPIN_MAX = 60000

class Gen:
    def __init__(self, stop=99, reuse=False, prof=False, force_slow=False):
        self.e = Emit(); self.stop = stop; self.prof = prof; self.force_slow = force_slow
        self.ws = WS(reuse)

    def srd(self, d, base, nbytes):
        self.e(f"s_mov_b32 s{d}, s{base}\ns_and_b32 s{d+1}, s{base+1}, 0xffff\ns_mov_b32 s{d+2}, {nbytes:#x}\ns_mov_b32 s{d+3}, 0x20000")

    def stamp(self, i):
        if not self.prof: return
        e = self.e
        e.wait_ds()
        e(f"s_memtime s[84:85]\ns_waitcnt lgkmcnt(0)\ns_lshl_b64 exec, s[98:99], {i}\nv_mov_b32 v{vPROF}, s84\ns_mov_b64 exec, -1")

    def sdiv(self, d, x, div, maxx):
        mul, sh = magic(div, maxx)
        self.e(f"s_mul_i32 s{d}, s{x}, {mul}\ns_lshr_b32 s{d}, s{d}, {sh}")

    def lds(self, addr):
        k = addr >> 16
        return f"v{vL0 + k}", addr & 0xffff

    def poll(self, vaddr, soff, mask, local):
        e = self.e
        top, done = e.newlabel("poll"), e.newlabel("pdone")
        e(f"s_mov_b64 exec, {mask}\ns_mov_b32 s{sSpin}, 0")
        e.label(top)
        e(f"""buffer_load_dword v24, v{vaddr}, s[{WSR}:{WSR+3}], {soff} offen sc1
s_add_u32 s{sSpin}, s{sSpin}, 1
s_waitcnt vmcnt(0)
v_cmp_eq_u32 vcc, 1, v24
s_cmp_eq_u64 vcc, exec
s_cbranch_scc1 {done}
s_cmp_lt_u32 s{sSpin}, {SPIN_MAX}
s_cbranch_scc1 {top}
s_branch LEND""")
        e.label(done)
        e("s_mov_b64 exec, -1")
        e.vmq = []
        if local:
            sk = e.newlabel("noinv")
            e(f"s_cmp_eq_u32 s{sMode}, 0\ns_cbranch_scc1 {sk}\nbuffer_inv sc1\ns_waitcnt vmcnt(0)")
            e.label(sk)

    def flag(self, soff, local):
        e = self.e
        e(f"v_mov_b32 v24, 1\nv_mov_b32 v25, 0\ns_mov_b64 exec, 1")
        if local:
            fast, done = e.newlabel("ffast"), e.newlabel("fdone")
            e(f"""s_cmp_eq_u32 s{sMode}, 0
s_cbranch_scc1 {fast}
buffer_wbl2 sc1
s_waitcnt vmcnt(0)
buffer_store_dword v24, v25, s[{WSR}:{WSR+3}], {soff} offen sc1
s_branch {done}""")
            e.label(fast)
            e.vm(f"buffer_store_dword v24, v25, s[{WSR}:{WSR+3}], {soff} offen", "flag")
            e.label(done)
        else:
            e.vm(f"buffer_store_dword v24, v25, s[{WSR}:{WSR+3}], {soff} offen sc1", "flag")
        e("s_mov_b64 exec, -1")

    def dma(self, stile, src, dst, n, tag="dma"):
        e = self.e
        q = -(-n // 4)
        steps = []
        for i in range(q):
            def step(i=i):
                if i == 0:
                    e(f"""s_mul_i32 s{sDst}, s{sW}, {q}
s_min_u32 s{sDst}, s{sDst}, {n - q}
s_lshl_b32 s{sDst}, s{sDst}, 10
s_add_u32 s{sSrc}, s{sDst}, s{stile}
s_add_u32 s{sSrc}, s{sSrc}, {src}
s_add_u32 s{sDst}, s{sDst}, {dst}
s_mov_b32 m0, s{sDst}""")
                elif i % 4 == 0:
                    e(f"s_add_u32 s{sSrc}, s{sSrc}, 4096\ns_add_u32 s{sDst}, s{sDst}, 4096\ns_mov_b32 m0, s{sDst}")
                e.vm(f"buffer_load_dwordx4 v{vL0}, s[{WSR}:{WSR+3}], s{sSrc} offen offset:{1024 * (i % 4)} sc1 lds", tag)
            steps.append(step)
        return steps

    def gemm(self, frags, ring, R, fill=None):
        e = self.e
        fill = fill or {}
        n = len(frags)
        def rd(j):
            e.ds(f"ds_read_b128 {v(ring + 4 * (j % R), 4)}, {frags[j][0]} offset:{frags[j][1]}", ("B", j))
        for j in range(min(R - 1, n)): rd(j)
        for j in range(n):
            if frags[j][2] is not None: e.wait_vm(frags[j][2])
            e.wait_ds(("B", j))
            for m in frags[j][3]: e(m.format(B=v(ring + 4 * (j % R), 4)))
            if j + R - 1 < n: rd(j + R - 1)
            for f in fill.get(j, []): f()

    def spread(self, fill, steps, first, every):
        for i, st in enumerate(steps): fill.setdefault(first + int(i * every), []).append(st)

    def xreduce(self, regs, tmp):
        e = self.e
        for op in ("v_permlane16_swap_b32", "v_permlane32_swap_b32"):
            for i, r in enumerate(regs): e(f"v_mov_b32 v{tmp + i}, v{r}")
            for i, r in enumerate(regs): e(f"{op} v{r}, v{tmp + i}")
            for i, r in enumerate(regs): e(f"v_add_f32 v{r}, v{r}, v{tmp + i}")

    def row_stats(self, ra, rb_, t):
        e = self.e
        for j in range(4):
            e(f"v_add_f32_dpp v{t + j}, v{ra + j}, v{ra + j} row_ror:8 row_mask:0xf bank_mask:0x3")
            e(f"v_add_f32_dpp v{t + j}, v{rb_ + j}, v{rb_ + j} row_ror:8 row_mask:0xf bank_mask:0xc")
        self.xreduce([t + j for j in range(4)], t + 4)
        for j in range(4): e(f"v_mov_b32_dpp v{t + 4 + j}, v{t + j} row_shl:4 row_mask:0xf bank_mask:0xf")
        e(f"s_mov_b32 s60, {f2u(-1.0 / 640):#x}\ns_mov_b32 s61, {f2u(1.0 / 640):#x}")
        for j in range(4): e(f"v_mul_f32 v{t + j}, s60, v{t + j}")
        for j in range(4): e(f"v_mul_f32 v{t + 8 + j}, v{t + j}, v{t + j}")
        for j in range(4): e(f"v_fma_f32 v{t + 4 + j}, v{t + 4 + j}, s61, -v{t + 8 + j}")
        for j in range(4): e(f"v_max_f32 v{t + 4 + j}, 0, v{t + 4 + j}")
        for j in range(4): e(f"v_add_f32 v{t + 4 + j}, {f2u(1e-5):#x}, v{t + 4 + j}")
        for j in range(4): e(f"v_rsq_f32 v{t + 4 + j}, v{t + 4 + j}")
        e(f"""v_lshrrev_b32 v{t + 8}, 3, v{vC}
v_and_b32 v{t + 9}, 3, v{vC}
v_lshlrev_b32 v{t + 9}, 4, v{t + 9}
v_lshl_add_u32 v{t + 8}, v{t + 8}, 6, v{t + 9}
s_lshl_b32 s60, s{sW}, 8
s_add_u32 s60, s60, {L_ST}
v_add_u32 v{t + 8}, s60, v{t + 8}
s_mov_b64 exec, 0x0f0f""")
        e.ds(f"ds_write_b128 v{t + 8}, {v(t, 4)}")
        e.ds(f"ds_write_b128 v{t + 8}, {v(t + 4, 4)} offset:128")
        e("s_mov_b64 exec, -1")
        e.wait_ds()

    def finish(self, phase):
        if self.stop == phase:
            self.e("s_branch LFIN")
            return True
        return False

    def gather(self, srd, voff, sbase, rowb, dst, tag, extra=None):
        e = self.e
        for j in range(8):
            va = voff
            if extra: va = extra(j)
            else: e(f"s_add_u32 s60, s{sbase}, {j * rowb}")
            e.vm(f"buffer_load_ushort v{dst + j}, v{va}, s[{srd}:{srd+3}], s60 offen", tag)

    def merge(self, src, dst):
        for j in range(4): self.e(f"v_lshl_or_b32 v{dst + j}, v{src + 2 * j + 1}, 16, v{src + 2 * j}")

    def phase0(self):
        e, ws = self.e, self.ws
        W = f"s[{WSR}:{WSR+3}]"
        e(f"""s_cmp_ge_u32 s2, 256
s_cbranch_scc1 LEND
s_load_dwordx16 s[64:79], s[0:1], 0
s_load_dwordx4 s[88:91], s[0:1], 64
s_load_dwordx2 s[92:93], s[0:1], 80
s_getpc_b64 s[60:61]
v_lshlrev_b32 v24, 7, v0
v_min_u32 v25, LCODE_END - {NAME} - 64, v24""")
        e.vm("global_load_dword v26, v25, s[60:61]")
        e(f"v_add_u32 v24, 0x8000, v24\nv_min_u32 v25, LCODE_END - {NAME} - 64, v24")
        e.vm("global_load_dword v27, v25, s[60:61]")
        if self.prof: e("s_mov_b64 s[98:99], 1\nv_mov_b32 v14, 0")
        e(f"""s_getreg_b32 s{sXCC}, hwreg(HW_REG_XCC_ID, 0, 4)
v_and_b32 v{vLane}, 63, v0
v_lshrrev_b32 v24, 6, v0
v_lshlrev_b32 v{vL0}, 4, v{vLane}
v_readfirstlane_b32 s{sW}, v24
v_add_u32 v{vL1}, 0x10000, v{vL0}
v_add_u32 v{vL2}, 0x20000, v{vL0}
v_lshrrev_b32 v{vG}, 4, v{vLane}
v_and_b32 v{vC}, 15, v{vLane}
v_mov_b32 v{vK01}, {f2u(-2 * 0.7978845608028654 * LOG2E):#x}
v_mov_b32 v{vK01 + 1}, {f2u(-2 * 0.7978845608028654 * 0.044715 * LOG2E):#x}
v_mov_b32 v{vC1E}, 1.0
v_mov_b32 v{vC1E + 1}, {f2u(1e-6):#x}
s_mov_b32 s{sLay}, 0
s_mov_b32 s{sLoff}, 0
s_mov_b32 s{sFoff}, 0
s_mov_b32 s{sKoff}, 0
s_mov_b32 s{sSoff}, 0
s_waitcnt lgkmcnt(0)""")
        self.srd(WSR, 92, ws.END); self.srd(XR_, 64, XA_SZ); self.srd(QKVR, 66, 640 * 3840); self.srd(WOR, 68, 640 * 1280)
        self.srd(WINR, 72, 640 * 3072); self.srd(WSPR, 74, 2048 * 4096); self.srd(BSPR, 76, 4096); self.srd(WOUTR, 78, 768 * 1280)
        self.srd(OUTR, 88, XA_SZ); self.srd(DBGR, 90, 256)
        if self.prof:
            e("s_memrealtime s[84:85]\ns_waitcnt lgkmcnt(0)\ns_lshl_b64 exec, s[98:99], 63\nv_mov_b32 v14, s84\ns_mov_b64 exec, -1")
        self.stamp(0)
        e(f"""v_mov_b32 v28, -1
v_mov_b32 v29, -1
v_mov_b32 v30, -1
v_mov_b32 v31, -1
v_mov_b32 v32, 0
v_mov_b32 v33, 0
v_mov_b32 v34, 0
v_mov_b32 v35, 0
v_mov_b32 v36, {OOB:#x}
s_mul_i32 s60, s2, {POISON_PER_WG}
s_mul_i32 s61, s{sW}, {POISON_PER_WG // 4}
s_add_u32 s60, s60, s61
s_add_u32 s60, s60, {ws.POISON}
v_cmp_gt_u32 vcc, 12, v{vLane}
v_cndmask_b32 v37, v36, v{vL0}, vcc""")
        e.vm(f"buffer_store_dwordx4 v[28:31], v{vL0}, {W}, s60 offen sc1", "clr")
        e.vm(f"buffer_store_dwordx4 v[28:31], v{vL0}, {W}, s60 offen offset:1024 sc1", "clr")
        e.vm(f"buffer_store_dwordx4 v[28:31], v37, {W}, s60 offen offset:2048 sc1", "clr")
        e(f"""s_mul_i32 s60, s2, 384
s_add_u32 s60, s60, {ws.FLAGS}
v_add_u32 v37, s60, v{vL0}
v_cmp_gt_u32 vcc, 24, v0
v_cndmask_b32 v37, v36, v37, vcc
s_lshl_b32 s60, s2, 7
s_add_u32 s60, s60, {ws.FA}
v_mov_b32 v38, s60
v_cmp_eq_u32 vcc, 24, v0
v_cndmask_b32 v37, v37, v38, vcc
s_lshl_b32 s60, s2, 5
s_add_u32 s60, s60, {ws.FB}
v_mov_b32 v38, s60
v_cmp_eq_u32 vcc, 25, v0
v_cndmask_b32 v37, v37, v38, vcc""")
        e.vm(f"buffer_store_dwordx4 v[32:35], v37, {W}, 0 offen sc1", "clr")
        e(f"""s_lshr_b32 s64, s2, 1
s_and_b32 s65, s2, 1
s_lshr_b32 s66, s2, 4
s_and_b32 s67, s64, 7
s_mul_i32 s61, s{sW}, 3
s_mul_i32 s62, s65, 10""")
        for i in range(3):
            e(f"""s_add_u32 s63, s61, {i}
s_add_u32 s{68 + i}, s63, s62
s_cmp_lt_u32 s63, 10
s_cselect_b32 s{71 + i}, 0, {OOB:#x}""")
        e(f"v_mul_u32_u24 v37, 1280, v{vC}\nv_lshl_add_u32 v37, v{vG}, 4, v37\ns_mul_i32 s74, s64, 20480")
        for i in range(3):
            e(f"s_lshl_b32 s60, s{68 + i}, 6\ns_add_u32 s60, s60, s74\ns_add_u32 s60, s60, s{71 + i}")
            e.vm(f"buffer_load_dwordx4 {v(88 + 4 * i, 4)}, v37, s[{XR_}:{XR_+3}], s60 offen", "x")
        qb, cd = e.newlabel("qblk"), e.newlabel("cdone")
        e(f"""s_mul_i32 s75, s66, 40
s_cmp_ge_u32 s67, 5
s_cbranch_scc1 {qb}
s_lshl_b32 s60, s67, 4
v_add_u32 v38, s60, v{vC}
v_cmp_le_u32 vcc, 40, v38
v_mov_b32 v39, 600
v_cndmask_b32 v39, 0, v39, vcc
v_add3_u32 v38, v38, v39, s75
v_add_u32 v38, 640, v38
s_branch {cd}""")
        e.label(qb)
        e(f"""s_sub_u32 s60, s67, 5
s_lshl_b32 s60, s60, 2
v_and_b32 v38, 3, v{vC}
v_add_u32 v38, s60, v38
v_cmp_le_u32 vcc, 5, v38
v_cndmask_b32 v39, 0, 15, vcc
v_add3_u32 v38, v38, v39, s75
v_lshrrev_b32 v39, 2, v{vC}
v_mad_u32_u24 v38, v39, 5, v38""")
        e.label(cd)
        e(f"v_mul_u32_u24 v39, {8 * 3840}, v{vG}\nv_lshl_add_u32 v38, v38, 1, v39")
        for i in range(3):
            e(f"s_mul_i32 s76, s{68 + i}, {32 * 3840}\ns_add_u32 s76, s76, s{71 + i}")
            self.gather(QKVR, 38, 76, 3840, 64 + 8 * i, ("gq", i))
        e.wait_vm("clr")
        nt = e.newlabel("notick")
        e(f"""s_barrier
s_lshl_b32 s60, s{sXCC}, 4
v_mov_b32 v120, 1
v_mov_b32 v121, s60
v_cmp_eq_u32 vcc, 0, v0
v_cndmask_b32 v121, v36, v121, vcc""")
        e.vm(f"buffer_atomic_add v120, v121, s[{DBGR}:{DBGR+3}], 0 offen sc0 sc1", "tick")
        for j in range(4): e(f"v_mov_b32 v{116 + j}, 0x3f803f80")
        e.wait_vm("x")
        e("v_mov_b32 v122, 0\nv_mov_b32 v123, 0")
        for j in range(12):
            e(f"v_dot2c_f32_bf16 v122, v{88 + j}, v116\nv_dot2c_f32_bf16 v123, v{88 + j}, v{88 + j}")
        e(f"s_mul_i32 s74, s64, 20480\ns_add_u32 s74, s74, {ws.X0}")
        for i in range(3):
            e(f"s_lshl_b32 s60, s{68 + i}, 10\ns_add_u32 s60, s60, s74\ns_add_u32 s60, s60, s{71 + i}")
            e.vm(f"buffer_store_dwordx4 {v(88 + 4 * i, 4)}, v{vL0}, {W}, s60 offen sc1", "crit")
        e(f"""v_permlane16_swap_b32 v122, v123
v_add_f32 v122, v122, v123
v_mov_b32 v123, v122
v_permlane32_swap_b32 v122, v123
v_add_f32 v122, v122, v123
s_lshl_b32 s60, s65, 2
s_add_u32 s60, s60, s{sW}
s_lshl_b32 s60, s60, 7
s_lshl_b32 s61, s64, 10
s_add_u32 s60, s60, s61
s_add_u32 s60, s60, {ws.ST0}
v_lshlrev_b32 v37, 2, v{vLane}
v_cmp_gt_u32 vcc, 32, v{vLane}
v_cndmask_b32 v39, v36, v37, vcc""")
        e.vm(f"buffer_store_dword v122, v39, {W}, s60 offen sc1", "crit")
        e(f"""s_mul_i32 s77, s66, {T_QKV}
s_add_u32 s77, s77, {ws.PW_QKV}
s_lshl_b32 s60, s67, 10
s_add_u32 s77, s77, s60
s_cmp_ge_u32 s67, 5
s_cselect_b32 s78, 1, 0
s_cselect_b32 s60, {102400 - 5120}, 0
s_add_u32 s77, s77, s60
s_lshr_b32 s78, 5120, s78
v_lshrrev_b32 v39, 2, v{vC}
v_lshlrev_b32 v39, 1, v39
v_and_b32 v40, 1, v{vC}
v_add_u32 v39, v39, v40
v_lshl_add_u32 v39, v{vG}, 3, v39
v_lshlrev_b32 v39, 4, v39
v_and_b32 v40, 2, v{vC}
v_cmp_eq_u32 vcc, 0, v40
v_cndmask_b32 v39, v36, v39, vcc
s_cmp_eq_u32 s67, 7
s_cselect_b64 vcc, -1, 0
v_cndmask_b32 v39, v{vL0}, v39, vcc""")
        for i in range(3):
            e.wait_vm(("gq", i))
            self.merge(64 + 8 * i, 100 + 4 * i)
            e(f"v_mfma_f32_16x16x32_bf16 v[112:115], v[116:119], {v(100 + 4 * i, 4)}, {'0' if i == 0 else 'v[112:115]'}")
            e(f"s_mul_i32 s60, s{68 + i}, s78\ns_add_u32 s60, s60, s77\ns_add_u32 s60, s60, s{71 + i}")
            e.vm(f"buffer_store_dwordx4 {v(100 + 4 * i, 4)}, v39, {W}, s60 offen sc1", "crit")
        e(f"""s_lshl_b32 s60, s66, 3
s_lshl_b32 s61, s65, 2
s_add_u32 s60, s60, s61
s_add_u32 s60, s60, s{sW}
s_lshl_b32 s60, s60, 9
s_lshl_b32 s61, s67, 6
s_add_u32 s60, s60, s61
s_add_u32 s60, s60, {ws.CS_QKV}
v_cmp_gt_u32 vcc, 16, v{vLane}
v_cndmask_b32 v41, v36, v37, vcc""")
        e.vm(f"buffer_store_dword v112, v41, {W}, s60 offen sc1", "crit")
        self.stamp(1)
        e(f"s_lshl_b32 s64, s2, 2\ns_add_u32 s64, s64, s{sW}")
        self.sdiv(65, 64, 10, 1023)
        e("s_mul_i32 s60, s65, 10\ns_sub_u32 s66, s64, s60")
        self.sdiv(67, 65, 6, 102)
        z1b, cd = e.newlabel("z1b"), e.newlabel("cdone")
        e(f"""s_mul_i32 s60, s67, 6
s_sub_u32 s68, s65, s60
s_cmp_lt_u32 s64, 960
s_cselect_b32 s69, 0, {OOB:#x}
s_cmp_ge_u32 s68, 3
s_cbranch_scc1 {z1b}
s_and_b32 s60, s67, 1
s_mul_i32 s60, s60, 3
s_add_u32 s60, s60, s68
s_lshl_b32 s60, s60, 4
s_lshr_b32 s61, s67, 1
s_mul_i32 s61, s61, 96
s_add_u32 s60, s60, s61
s_add_u32 s60, s60, 768
v_and_b32 v38, 3, v{vC}
v_bfe_u32 v39, v{vC}, 2, 1
v_lshl_add_u32 v38, v39, 3, v38
v_lshrrev_b32 v39, 3, v{vC}
v_lshl_add_u32 v38, v39, 2, v38
v_add_u32 v38, s60, v38
s_branch {cd}""")
        e.label(z1b)
        e(f"""s_mul_i32 s60, s67, 48
s_sub_u32 s61, s68, 3
s_lshl_b32 s61, s61, 2
s_cmp_eq_u32 s68, 5
s_cselect_b32 s61, 32, s61
s_cselect_b32 s62, 4, 8
s_add_u32 s60, s60, s61
v_lshrrev_b32 v39, 2, v{vC}
v_and_b32 v38, 3, v{vC}
v_mad_u32_u24 v38, v39, s62, v38
v_add_u32 v38, s60, v38""")
        e.label(cd)
        e(f"v_mul_u32_u24 v39, {8 * 3072}, v{vG}\nv_lshl_add_u32 v38, v38, 1, v39")
        for i in range(2):
            e(f"s_lshl_b32 s76, s66, 1\ns_add_u32 s76, s76, {i}\ns_mul_i32 s76, s76, {32 * 3072}\ns_add_u32 s76, s76, s69")
            self.gather(WINR, 38, 76, 3072, 64 + 8 * i, ("gi", i))
        e(f"""s_mul_i32 s70, s67, {T_IN}
s_add_u32 s70, s70, {ws.PW_IN}
s_lshl_b32 s60, s68, 10
s_add_u32 s70, s70, s60
s_cmp_ge_u32 s68, 3
s_cselect_b32 s60, {61440 - 3072}, 0
s_add_u32 s70, s70, s60
s_mul_i32 s60, s66, 6144
s_add_u32 s70, s70, s60
s_add_u32 s70, s70, s69
s_mul_i32 s71, s67, 10
s_add_u32 s71, s71, s66
s_mul_i32 s71, s71, 384
s_lshl_b32 s60, s68, 6
s_add_u32 s71, s71, s60
s_add_u32 s71, s71, {ws.CS_IN}
s_add_u32 s71, s71, s69""")
        wout, cd = e.newlabel("wout"), e.newlabel("cdone")
        e(f"s_cmp_ge_u32 s64, 400\ns_cbranch_scc1 {wout}")
        self.sdiv(72, 64, 50, 399)
        e("s_mul_i32 s60, s72, 50\ns_sub_u32 s61, s64, s60")
        self.sdiv(73, 61, 10, 49)
        e(f"""s_mul_i32 s60, s73, 10
s_sub_u32 s74, s61, s60
s_lshl_b32 s74, s74, 1
s_mul_i32 s75, s72, {T_O}
s_add_u32 s75, s75, {ws.PW_O}
s_mov_b32 s79, 0
s_mov_b32 s77, {15 * 1280}
s_mov_b32 s88, s{WOR}
s_mov_b32 s89, s{WOR + 1}
s_mov_b32 s90, {640 * 1280}""")
        m5, h5 = magic(5, 95)
        for i in range(2):
            e(f"""s_add_u32 s60, s74, {i}
s_lshl_b32 s60, s60, 2
v_add_u32 v40, s60, v{vG}
v_mul_u32_u24 v41, {m5}, v40
v_lshrrev_b32 v41, {h5}, v41
v_mul_u32_u24 v42, 5, v41
v_sub_u32 v40, v40, v42
v_cmp_eq_u32 vcc, 4, v40
v_cndmask_b32 v{46 + i}, 0, 1, vcc
v_cndmask_b32 v40, v40, 0, vcc
v_mul_u32_u24 v40, 5, v40
v_mad_u32_u24 v{44 + i}, v41, 40, v40""")
        e(f"s_branch {cd}")
        e.label(wout)
        e("s_sub_u32 s63, s64, 400")
        self.sdiv(72, 63, 60, 623)
        e("s_mul_i32 s60, s72, 60\ns_sub_u32 s61, s63, s60")
        self.sdiv(73, 61, 12, 59)
        e(f"""s_mul_i32 s60, s73, 12
s_sub_u32 s74, s61, s60
s_lshl_b32 s74, s74, 1
s_mul_i32 s75, s72, {T_OUT}
s_add_u32 s75, s75, {ws.PW_OUT}
s_cmp_lt_u32 s64, 880
s_cselect_b32 s79, 0, {OOB:#x}
s_mov_b32 s77, 0
s_mov_b32 s88, s{WOUTR}
s_mov_b32 s89, s{WOUTR + 1}
s_mov_b32 s90, {768 * 1280}""")
        for i in range(2):
            e(f"s_add_u32 s60, s74, {i}\ns_lshl_b32 s60, s60, 5\nv_lshlrev_b32 v{44 + i}, 3, v{vG}\nv_add_u32 v{44 + i}, s60, v{44 + i}\nv_mov_b32 v{46 + i}, 0")
        e.label(cd)
        e(f"""s_mov_b32 s91, 0x20000
s_mul_i32 s60, s72, 80
s_lshr_b32 s61, s73, 1
s_lshl_b32 s61, s61, 5
s_add_u32 s60, s60, s61
s_and_b32 s61, s73, 1
s_lshl_b32 s61, s61, 2
s_add_u32 s60, s60, s61
s_cmp_eq_u32 s73, 4
s_cselect_b32 s62, 4, 8
v_lshrrev_b32 v40, 2, v{vC}
v_and_b32 v41, 3, v{vC}
v_mad_u32_u24 v41, v40, s62, v41
v_add_u32 v41, s60, v41
v_lshlrev_b32 v41, 1, v41
s_mov_b32 s60, 1280
v_mad_u32_u24 v44, v44, s60, v41
v_mad_u32_u24 v45, v45, s60, v41
s_mul_i32 s60, s74, 5120
s_add_u32 s75, s75, s60
s_lshl_b32 s60, s73, 10
s_add_u32 s75, s75, s60
s_add_u32 s75, s75, s79""")
        P = [0, 1, 2, 3, 4, 20, 21, 22]; Q = [23, 24, 28, 29, 33, 34, 38, 39]
        for i in range(2):
            def extra(j, i=i):
                e(f"s_mov_b32 s61, {(Q[j] - P[j]) * 1280}\nv_mad_u32_u24 v43, v{46 + i}, s61, v{44 + i}\ns_add_u32 s60, s79, {j * 1280}")
                if j >= 5: e("s_add_u32 s60, s60, s77")
                return 43
            self.gather(88, None, None, None, 80 + 8 * i, ("go", i), extra)
        e.wait_vm("crit")
        e(f"s_barrier\ns_lshl_b32 s63, s2, 7\ns_add_u32 s63, s63, {ws.FA}\ns_cmp_eq_u32 s{sW}, 0\ns_cselect_b32 s63, s63, {OOB:#x}")
        self.flag("s63", False)
        self.stamp(2)
        for i in range(2):
            e.wait_vm(("gi", i))
            self.merge(64 + 8 * i, 100 + 4 * i)
            e(f"v_mfma_f32_16x16x32_bf16 v[112:115], v[116:119], {v(100 + 4 * i, 4)}, {'0' if i == 0 else 'v[112:115]'}")
            e.vm(f"buffer_store_dwordx4 {v(100 + 4 * i, 4)}, v{vL0}, {W}, s70 offen offset:{3072 * i} sc1")
        for i in range(2):
            e.wait_vm(("go", i))
            self.merge(80 + 8 * i, 108 + 16 * i)
            e(f"s_add_u32 s60, s75, {5120 * i}")
            e.vm(f"buffer_store_dwordx4 {v(108 + 16 * i, 4)}, v{vL0}, {W}, s60 offen sc1")
        e(f"v_cmp_gt_u32 vcc, 16, v{vLane}\nv_cndmask_b32 v41, v36, v37, vcc")
        e.vm(f"buffer_store_dword v112, v41, {W}, s71 offen sc1")
        nw0, top, done = e.newlabel("nw0"), e.newlabel("reg"), e.newlabel("regd")
        e(f"s_cmp_eq_u32 s{sW}, 0\ns_cbranch_scc0 {nw0}\ns_mov_b32 s{sSpin}, 0")
        e.label(top)
        e(f"buffer_load_dword v24, v{vL0}, s[{DBGR}:{DBGR+3}], 0 offen sc1\ns_add_u32 s{sSpin}, s{sSpin}, 1\ns_waitcnt vmcnt(0)")
        e("s_mov_b32 s60, 0\ns_mov_b32 s61, 0\ns_mov_b32 s62, 0")
        for j in range(16):
            e(f"""v_readlane_b32 s63, v24, {j}
s_add_u32 s60, s60, s63
s_cmp_gt_u32 s{sXCC}, {j}
s_cselect_b32 s64, s63, 0
s_add_u32 s61, s61, s64""")
            if j < 8: e("s_xor_b32 s63, s63, 32\ns_or_b32 s62, s62, s63")
        e(f"""s_cmp_eq_u32 s60, 256
s_cbranch_scc1 {done}
s_cmp_lt_u32 s{sSpin}, {SPIN_MAX}
s_cbranch_scc1 {top}
s_branch LEND""")
        e.label(done)
        e(f"""v_readfirstlane_b32 s63, v120
s_add_u32 s61, s61, s63
v_mov_b32 v24, s61
v_mov_b32 v25, s62
v_mov_b32 v26, {L_BC}
ds_write_b64 v26, v[24:25]""")
        e.label(nw0)
        e(f"""s_waitcnt vmcnt(0) lgkmcnt(0)
s_barrier
v_mov_b32 v26, {L_BC}
ds_read_b64 v[24:25], v26
s_lshl_b32 s63, s2, 5
s_add_u32 s63, s63, {ws.FB}
s_cmp_eq_u32 s{sW}, 0
s_cselect_b32 s63, s63, {OOB:#x}
s_waitcnt lgkmcnt(0)
v_readfirstlane_b32 s60, v24
v_readfirstlane_b32 s{sMode}, v25""")
        e.vmq = []
        self.flag("s63", False)
        if self.force_slow: e(f"s_mov_b32 s{sMode}, 1\ns_mov_b32 s60, s2")
        e(f"""s_and_b32 s60, s60, 255
s_lshr_b32 s{sX}, s60, 5
s_and_b32 s{sL}, s60, 31
s_lshr_b32 s{sRB}, s{sL}, 4
s_and_b32 s{sCG}, s{sL}, 15
s_lshr_b32 s{sRQ}, s{sL}, 3
s_and_b32 s{sCT}, s{sL}, 7
s_lshl_b32 s60, s{sX}, 4
s_lshl_b32 s61, s{sRB}, 3
s_add_u32 s{sRT1}, s60, s61
s_lshl_b32 s61, s{sW}, 1
s_add_u32 s{sRT1}, s{sRT1}, s61
s_lshl_b32 s61, s{sRQ}, 2
s_add_u32 s{sRT2}, s60, s61
s_add_u32 s{sRT2}, s{sRT2}, s{sW}
s_mul_i32 s{sTQ}, s{sCG}, {T_QKV}
s_add_u32 s{sTQ}, s{sTQ}, {ws.PW_QKV}
s_mul_i32 s{sTO}, s{sCT}, {T_O}
s_add_u32 s{sTO}, s{sTO}, {ws.PW_O}
s_mul_i32 s{sTI}, s{sCG}, {T_IN}
s_add_u32 s{sTI}, s{sTI}, {ws.PW_IN}
s_mul_i32 s{sTW}, s{sCT}, {T_OUT}
s_add_u32 s{sTW}, s{sTW}, {ws.PW_OUT}
s_mul_i32 s60, s{sCT}, 10
v_add_u32 v24, s60, v{vG}
v_lshlrev_b32 v{vXa}, 8, v24
v_lshl_add_u32 v{vXa}, v{vC}, 4, v{vXa}
v_lshrrev_b32 v24, 1, v{vG}
v_add3_u32 v24, v24, s60, 8
v_lshlrev_b32 v{vXb}, 8, v24
v_lshl_add_u32 v{vXb}, v{vC}, 4, v{vXb}
v_and_b32 v24, 1, v{vG}
v_lshl_add_u32 v{vXb}, v24, 3, v{vXb}
s_lshl_b32 s60, s{sCG}, 4
v_add_u32 v26, s60, v{vLane}
s_lshl_b32 s60, s{sRT1}, 1
s_sub_u32 s60, s60, 16
v_add_u32 v27, s60, v{vLane}
v_cmp_le_u32 vcc, 16, v{vLane}
v_cndmask_b32 v26, v26, v27, vcc
s_lshl_b32 s60, s{sRT2}, 1
s_sub_u32 s60, s60, 20
v_add_u32 v27, s60, v{vLane}
v_cmp_le_u32 vcc, 20, v{vLane}
v_cndmask_b32 v26, v26, v27, vcc
v_lshlrev_b32 v26, 7, v26
s_mov_b32 s63, {ws.FA}""")
        self.stamp(3)
        self.poll(26, "s63", "0x3fffff", False)
        self.stamp(4)
        e(f"""v_lshlrev_b32 v26, 2, v0
v_cmp_gt_u32 vcc, 128, v0
v_cndmask_b32 v27, v36, v26, vcc
s_lshl_b32 s60, s{sCG}, 12
s_add_u32 s60, s60, {ws.CS_QKV}""")
        for j in range(8): e.vm(f"buffer_load_dword v{64 + j}, v27, {W}, s60 offen offset:{512 * j} sc1", "cs")
        e(f"s_mul_i32 s60, s{sRT2}, 20480\ns_add_u32 s60, s60, {ws.X0}")
        e.vm(f"buffer_load_dwordx4 {v(vXR, 4)}, v{vXa}, {W}, s60 offen sc1")
        e.vm(f"buffer_load_dwordx4 {v(vXR + 4, 4)}, v{vXa}, {W}, s60 offen offset:1024 sc1")
        e.vm(f"buffer_load_dwordx2 {v(vXR + 8, 2)}, v{vXb}, {W}, s60 offen sc1")
        for st in self.dma(sTQ, 0, 122880, 30) + self.dma(sTQ, 30720, 0, 120): st()
        e.wait_vm("cs")
        for j in range(1, 8): e(f"v_add_f32 v64, v64, v{64 + j}")
        e(f"v_add_u32 v26, {L_CSQ}, v26\ns_mov_b64 s[86:87], exec\nv_cmp_gt_u32 vcc, 128, v0\ns_and_b64 exec, exec, vcc")
        e.ds("ds_write_b32 v26, v64")
        e("s_mov_b64 exec, -1")
        e.wait_ds(); e.wait_vm()

    def build(self):
        e = self.e
        e.label(NAME)
        self.phase0()
        if not self.finish(0):
            from phases import body
            body(self)
        e.label("LFIN")
        if self.prof:
            self.e.lgq = []
            e(f"""s_memrealtime s[84:85]
s_waitcnt lgkmcnt(0)
s_mov_b64 exec, 1
s_lshl_b64 exec, exec, 62
v_mov_b32 v14, s84
s_mov_b64 exec, -1
s_lshl_b32 s60, s{sX}, 5
s_add_u32 s60, s60, s{sL}
s_lshl_b32 s60, s60, 2
s_add_u32 s60, s60, s{sW}
s_lshl_b32 s60, s60, 8
s_add_u32 s60, s60, {self.ws.PROF}
v_lshlrev_b32 v24, 2, v{vLane}
buffer_store_dword v14, v24, s[{WSR}:{WSR+3}], s60 offen""")
        e.label("LEND")
        e("s_endpgm")
        e.label("LCODE_END")
        lines, nops = pad_hazards(e.L)
        head = f"""; Persistent kernel: one workgroup per CU, phases chained through flags in d_ws. Generated by dev/gen.py.
; @launch grid=(256,1,1) block=(256,1,1) lds={LDS_BYTES}
.amdgcn_target "amdgcn-amd-amdhsa--gfx950"
.text
.globl {NAME}
.p2align 8
.type {NAME},@function
"""
        tail = f"""
.fill 64, 4, 0xbf800000
.section .rodata,"a"
.p2align 6
.amdhsa_kernel {NAME}
  .amdhsa_next_free_vgpr 512
  .amdhsa_next_free_sgpr 102
  .amdhsa_accum_offset 256
  .amdhsa_group_segment_fixed_size 0
  .amdhsa_kernarg_size 88
  .amdhsa_user_sgpr_count 2
  .amdhsa_user_sgpr_kernarg_segment_ptr 1
  .amdhsa_system_sgpr_workgroup_id_x 1
.end_amdhsa_kernel
"""
        return head + "\n".join(("" if l.endswith(":") else "    ") + l for l in lines) + tail, nops

if __name__ == "__main__":
    import argparse
    ap = argparse.ArgumentParser()
    ap.add_argument("-o", default="k.s"); ap.add_argument("--stop", type=int, default=99)
    ap.add_argument("--reuse", action="store_true"); ap.add_argument("--prof", action="store_true"); ap.add_argument("--slow", action="store_true")
    x = ap.parse_args()
    t, nops = Gen(x.stop, x.reuse, x.prof, x.slow).build()
    open(x.o, "w").write(t)
    print("lines", t.count("\n"), "nops", nops)
```

```python
def _al(x, a=4096): return -(-x // a) * a

T_QKV, T_O, T_IN, T_OUT = 153600, 102400, 122880, 122880
Q_FULL, Q_HALF = 102400, 143360
XA_SZ, UA_SZ, ST_SZ = 2048 * 640 * 2, 2048 * 768 * 2, 128 * 1024
KV_REC = 3456
POISON_PER_WG = 8960

class WS:
    def __init__(self, reuse):
        o = 0
        def take(n):
            nonlocal o
            r = o; o = _al(o + n); return r
        self.FLAGS = take(49152)
        self.F_O, self.F_X1, self.F_U, self.F_X2, self.F_Z = [self.FLAGS + x for x in (0, 4096, 8192, 12288, 16384)]
        self.FA = take(256 * 128)
        self.POISON = take(256 * POISON_PER_WG)
        self.KVP = self.POISON
        self.KVP_L = 256 * KV_REC
        self.S3 = self.POISON + 2 * self.KVP_L
        self.S3_L = 1024 * 256
        assert 2 * self.KVP_L + 2 * self.S3_L == 256 * POISON_PER_WG
        self.CS_QKV = take(16 * 20 * 512)
        self.CS_IN = take(16 * 20 * 384)
        self.PW_QKV = take(16 * T_QKV)
        self.PW_O = take(8 * T_O)
        self.PW_IN = take(16 * T_IN)
        self.PW_OUT = take(8 * T_OUT)
        base = o
        self.X0 = take(XA_SZ); self.ST0 = take(ST_SZ); self.O = take(XA_SZ); self.X1 = take(XA_SZ); self.ST1 = take(ST_SZ)
        self.Z1 = take(UA_SZ); self.ZT = take(UA_SZ); self.U = take(UA_SZ)
        self.LSTR = 0 if reuse else o - base
        o += self.LSTR
        self.PROF = take(1024 * 256)
        self.END = o

LDS_BYTES = 163840
SCR = 155648
L_BC = SCR
L_ST = SCR + 256
L_CSQ = SCR + 1280
L_CSI = SCR + 1792
L_KVT = SCR + 2304
OOB = 0x40000000

_E = [8 * w + d for w in range(4) for d in (4, 5)]
_KR = [8 * w + d for w in range(4) for d in (0, 1, 6, 7)] + [32]
_Q = [8 * w + d for w in range(4) for d in (2, 3)] + [33, 34, 35, 36, 37]
G_QKV = _E + _KR + _Q
EXCH = 4
G_O = [g for g in _E + _KR if not EXCH <= g < EXCH + 5] + list(range(EXCH, EXCH + 5))
G_IN = _Q + _KR
G_OUT = [8 * (i & 3) + (i >> 2) for i in range(16)] + [34, 35, 36, 37] + [8 * w + d for w in range(4) for d in (6, 7)] + [32, 33]
assert sorted(G_QKV) == list(range(38)) and len(set(G_O)) == 25 and len(set(G_IN)) == 30 and sorted(G_OUT + _E) == list(range(38))
def place(gmap, off): return gmap[off >> 12] * 4096 + (off & 4095)
```

```python
from kemit import *
from layout import *
from gen import *

W = f"s[{WSR}:{WSR+3}]"
MF = "v_mfma_f32_16x16x32_bf16"
MF32 = "v_mfma_f32_32x32x16_bf16"

def pkb(reg):
    return v(reg & ~1, 2), reg & 1

def pk(e, op, d, srcs):
    ops, lo, hi = [], [], []
    for k, r in srcs:
        if k == "p": ops.append(v(r, 2)); lo.append(0); hi.append(1)
        else:
            t, sel = pkb(r); ops.append(t); lo.append(sel); hi.append(sel)
    e(f"v_pk_{op}_f32 {v(d, 2)}, {', '.join(ops)} op_sel:[{','.join(map(str, lo))}] op_sel_hi:[{','.join(map(str, hi))}]")

def a_loads(G, sbase, tiles, nks, off):
    e = G.e
    out = []
    for ks in range(nks):
        def ld(ks=ks):
            for T in range(tiles):
                o = off(ks, T)
                e(f"s_add_u32 s{sSrc}, s{sbase}, {o & ~4095}")
                e.vm(f"buffer_load_dwordx4 {a((ks * tiles + T) * 4, 4)}, v{vL0}, {W}, s{sSrc} offen offset:{o & 4095} sc1", ("A", ks))
        out.append(ld)
    return out

def run(gen):
    for _ in gen: pass

def phi(e, items, t):
    for n, (ac, rs, rl, dst) in enumerate(items):
        u = t + 4 * (n & 1)
        pk(e, "mul", u, [("p", ac), rl])
        pk(e, "fma", u + 2, [("p", ac), rs, ("b", vC1E)])
        e(f"v_exp_f32_e64 v{u}, v{u} clamp\nv_exp_f32_e64 v{u + 1}, v{u + 1} clamp")
        e(f"v_max_f32 v{u}, v{u}, v{u + 2}\nv_max_f32 v{u + 1}, v{u + 1}, v{u + 3}")
        pk(e, "add", u, [("p", u), ("b", vC1E + 1)])
        if callable(dst): dst(u)
        else: e(f"v_cvt_pk_bf16_f32 v{dst}, v{u}, v{u + 1}")

def gelu(e, items, t):
    for i in range(0, len(items), 2):
        grp = items[i:i + 2]
        for n, (ac, rs) in enumerate(grp): pk(e, "mul", ac, [("p", ac), rs])
        for n, (ac, rs) in enumerate(grp): pk(e, "mul", t + 2 * n, [("p", ac), ("p", ac)])
        for n, (ac, rs) in enumerate(grp): pk(e, "fma", t + 2 * n, [("p", t + 2 * n), ("b", vK01 + 1), ("b", vK01)])
        for n, (ac, rs) in enumerate(grp): pk(e, "mul", t + 2 * n, [("p", t + 2 * n), ("p", ac)])
        for j in range(2 * len(grp)): e(f"v_exp_f32 v{t + j}, v{t + j}")
        for n, (ac, rs) in enumerate(grp): pk(e, "add", t + 2 * n, [("p", t + 2 * n), ("b", vC1E)])
        for j in range(2 * len(grp)): e(f"v_rcp_f32 v{t + j}, v{t + j}")
        for n, (ac, rs) in enumerate(grp): pk(e, "mul", ac, [("p", ac), ("p", t + 2 * n)])

def sentinel_retry(G, issue, regs, t):
    e = G.e
    chk, ok = e.newlabel("chk"), e.newlabel("ok")
    e(f"s_mov_b32 s{sSpin}, 0")
    e.wait_vm("sent")
    saved = list(e.vmq)
    e.label(chk)
    e(f"v_max_u32 v{t}, v{regs[0]}, v{regs[1]}")
    for i in range(2, len(regs), 2): e(f"v_max3_u32 v{t}, v{regs[i]}, v{regs[i + 1]}, v{t}")
    e(f"""v_cmp_eq_u32 vcc, -1, v{t}
s_add_u32 s{sSpin}, s{sSpin}, 1
s_cmp_eq_u64 vcc, 0
s_cbranch_scc1 {ok}
s_cmp_ge_u32 s{sSpin}, {SPIN_MAX}
s_cbranch_scc1 LEND""")
    e.vmq = []
    issue()
    e(f"s_waitcnt vmcnt(0)\ns_branch {chk}")
    e.label(ok)
    e.vmq = saved

def p1(G):
    e, ws = G.e, G.ws
    ACC, QAC, RING = 40, 80, 104
    NM, RS, RL, CSK, NMT, RST, RLT, CSQ, T0, OP = 144, 152, 160, 168, 174, 176, 178, 180, 192, 220
    e.label("LP1_WAIT")
    e(f"""s_lshl_b32 s63, s{sX}, 3
s_lshl_b32 s60, s{sRB}, 2
s_add_u32 s63, s63, s60
s_add_u32 s63, s63, s{sW}
s_lshl_b32 s63, s63, 6
s_add_u32 s63, s63, {ws.F_X2}
v_lshlrev_b32 v26, 2, v{vLane}""")
    G.poll(26, "s63", "0xffff", True)
    e.label("LP1_GO")
    e.vmq = list(G.entry_vmq)
    G.stamp(5)
    e(f"s_mul_i32 s64, s{sRT1}, 20480\ns_add_u32 s64, s64, s{sLoff}\ns_add_u32 s64, s64, {ws.X0}")
    AL = a_loads(G, 64, 2, 20, lambda ks, T: T * 20480 + ks * 1024)
    D = 4
    AL[0]()
    e(f"s_lshl_b32 s62, s{sRT1}, 10\ns_add_u32 s62, s62, s{sLoff}\ns_add_u32 s62, s62, {ws.ST0}")
    e.vm(f"buffer_load_dwordx4 {v(T0, 4)}, v{vL0}, {W}, s62 offen sc1", "st")
    e.vm(f"buffer_load_dwordx4 {v(T0 + 4, 4)}, v{vL0}, {W}, s62 offen offset:1024 sc1", "st")
    for ks in range(1, D): AL[ks]()
    def s1():
        yield from G.row_stats(T0, T0 + 4, T0 + 8)
        yield from G.each(f"""v_lshl_add_u32 v26, v{vG}, 4, s65
v_lshl_add_u32 v27, v{vC}, 2, s65
v_lshlrev_b32 v28, 2, v{vC}
v_add_u32 v28, {L_CSQ}, v28
v_lshlrev_b32 v29, 4, v{vG}
v_add_u32 v29, {L_CSQ + 320}, v29""")
        rds = []
        for T in range(2):
            rds += [f"ds_read_b128 {v(NM + 4 * T, 4)}, v26 offset:{64 * T}", f"ds_read_b128 {v(RS + 4 * T, 4)}, v26 offset:{128 + 64 * T}",
                    f"ds_read_b32 v{NMT + T}, v27 offset:{64 * T}", f"ds_read_b32 v{RST + T}, v27 offset:{128 + 64 * T}"]
        rds += [f"ds_read_b32 v{CSK + b}, v28 offset:{64 * b}" for b in range(5)]
        rds += [f"ds_read_b128 {v(CSQ + 4 * b, 4)}, v29 offset:{64 * b}" for b in range(3)]
        for r in rds:
            e.ds(r, "cst"); yield; yield
        yield from G.each(f"""v_add_u32 v26, s{sWK}, v{vL0}
v_add_u32 v26, {EXCH * 4096}, v26
s_add_u32 s68, s{sW}, 1
s_lshr_b32 s68, s68, 1
s_lshl_b32 s60, s{sW}, 2
s_lshr_b32 s69, 0x3422, s60
s_and_b32 s69, s69, 15
s_lshr_b32 s70, 0x4433, s60
s_and_b32 s70, s70, 15""")
        for i, sv in enumerate((68, 69, 70)):
            yield from G.each(f"s_add_u32 s60, s{sv}, {EXCH}\ns_lshl_b32 s60, s60, 12\nv_add_u32 v{27 + i}, s60, v{vL0}")
        yield from G.each(f"""s_lshl_b32 s60, s68, 4
v_lshl_add_u32 v39, v{vG}, 2, s60
v_cmp_le_u32 vcc, 20, v39
v_cmp_gt_u32 s[72:73], 40, v39
v_mov_b32 v36, {OOB:#x}
v_cndmask_b32 v30, 0, 1, vcc
v_mul_u32_u24 v31, 1600, v30
v_lshl_add_u32 v31, v39, 2, v31
v_mul_u32_u24 v35, 20, v30""")
        for i, sv in enumerate((69, 70)):
            yield from G.each(f"""s_lshl_b32 s60, s{sv}, 4
s_sub_u32 s60, s60, 40
v_add_u32 v32, s60, v{vC}
v_sub_u32 v32, v32, v35
v_cmp_gt_u32 vcc, 20, v32
v_mul_u32_u24 v32, 80, v32
s_and_b64 vcc, vcc, s[72:73]
v_add_u32 v32, v32, v31
v_cndmask_b32 v{33 + i}, v36, v32, vcc""")
        yield from G.each(f"""v_cmp_eq_u32 vcc, 0, v{vC}
v_add_u32 v32, 1600, v31
s_and_b64 vcc, vcc, s[72:73]
v_cndmask_b32 v35, v36, v32, vcc
s_lshl_b32 s71, s{sCG}, 4
s_mul_i32 s71, s71, {KV_REC}
s_add_u32 s71, s71, s{sKoff}
s_add_u32 s71, s71, {ws.KVP}
s_lshl_b32 s60, s{sX}, 1
s_add_u32 s60, s60, s{sRB}
s_mul_i32 s60, s60, {KV_REC}
s_add_u32 s74, s60, s71
v_lshlrev_b32 v39, 4, v0
v_cmp_gt_u32 vcc, 210, v0
v_lshrrev_b32 v38, 2, v{vC}
v_lshlrev_b32 v38, 1, v38
v_cndmask_b32 v37, v36, v39, vcc
v_add_u32 v39, {L_KVT}, v39
v_and_b32 v32, 1, v{vC}
v_add_u32 v38, v38, v32
v_lshl_add_u32 v38, v{vG}, 3, v38
v_lshlrev_b32 v38, 4, v38
v_add_u32 v38, 0x20000, v38
v_cmp_gt_u32 s[66:67], 8, v{vC}
s_mov_b32 s60, {f2u(LOG2E):#x}""")
        e.wait_ds("cst")
        yield from G.each("\n".join([f"v_mul_f32 v{RL + j}, s60, v{RS + j}" for j in range(8)] + [f"v_mul_f32 v{RLT + j}, s60, v{RST + j}" for j in range(2)]))
    frags, fill = [], {}
    for ks in range(20):
        for b in range(5):
            r, o = G.lds(place(G_QKV, ks * 5120 + 1024 * b))
            ms = [f"{MF} {v(ACC + (2 * b + T) * 4, 4)}, {a((2 * ks + T) * 4, 4)}, {{B}}, {'0' if ks == 0 else v(ACC + (2 * b + T) * 4, 4)}" for T in range(2)]
            frags.append((r, o, ("A", ks) if b == 0 else None, ms))
        if ks + D < 20: fill.setdefault(5 * ks + 1, []).append(AL[ks + D])
    G.spread(fill, G.dma(sTQ, G_QKV, range(13, 19), "Bb"), 3, 4)
    G.spread(fill, G.dma(sTQ, G_QKV, range(19, 25), "Bc"), 28, 4)
    G.spread(fill, G.dma(sTQ, G_QKV, range(25, 38), "Bq"), 62, 3)
    G.gemm(frags, RING, 10, fill, {0: G.bar("B0"), 52: G.bar("Bb"), 76: G.bar("Bc")}, s1(), 2, 6)
    G.stamp(6)
    acc = lambda b, T, h: ACC + (2 * b + T) * 4 + 2 * h
    for b in range(5):
        for T in range(2):
            for h in range(2): pk(e, "fma", acc(b, T, h), [("p", NM + 4 * T + 2 * h), ("b", CSK + b), ("p", acc(b, T, h))])
    items = []
    for b in range(3):
        for T in range(2):
            for h in range(2):
                dst = OP + 4 * b + 2 * T + h
                if b == 2:
                    def dst(u, T=T, h=h, d=dst):
                        pk(e, "mul", u + 2, [("p", acc(2, T, h)), ("p", RS + 4 * T + 2 * h)])
                        e(f"v_cndmask_b32 v{u}, v{u + 2}, v{u}, s[66:67]\nv_cndmask_b32 v{u + 1}, v{u + 3}, v{u + 1}, s[66:67]")
                        e(f"v_cvt_pk_bf16_f32 v{d}, v{u}, v{u + 1}")
                items.append((acc(b, T, h), ("p", RS + 4 * T + 2 * h), ("p", RL + 4 * T + 2 * h), dst))
    e("s_barrier")
    for b in (3, 4):
        for T in range(2):
            for h in range(2): pk(e, "mul", acc(b, T, h), [("p", acc(b, T, h)), ("p", RS + 4 * T + 2 * h)])
        for T in range(2):
            for h in range(2): e(f"v_cvt_pk_bf16_f32 v{OP + 4 * b + 2 * T + h}, v{acc(b, T, h)}, v{acc(b, T, h) + 1}")
        e.ds(f"ds_write_b128 v26, {v(OP + 4 * b, 4)} offset:{4096 * b}")
    for b in range(3):
        phi(e, items[4 * b:4 * b + 4], T0)
        e.ds(f"ds_write_b128 v26, {v(OP + 4 * b, 4)} offset:{4096 * b}")
    for j in range(4): e(f"v_mov_b32 v{T0 + j}, 0x3f803f80")
    e.wait_ds()
    e("s_barrier")
    for sw in range(4):
        for i in range(3): e.ds(f"ds_read_b128 {v(40 + 12 * sw + 4 * i, 4)}, v{27 + i} offset:{1024 * sw}", ("ex", sw))
    for sw in range(4):
        e.wait_ds(("ex", sw))
        for i in range(3):
            B = v(40 + 12 * sw + 4 * (i + 1), 4) if i < 2 else v(T0, 4)
            e(f"{MF} {v(240 + 4 * i, 4)}, {v(40 + 12 * sw, 4)}, {B}, {'0' if sw == 0 else v(240 + 4 * i, 4)}")
    for i in range(3): e.vm(f"buffer_store_dwordx4 {v(240 + 4 * i, 4)}, v{33 + i}, {W}, s74 offen sc1")
    e.wait_vm("Bq")
    e("s_barrier")
    G.stamp(7)
    def gat(j):
        e(f"s_add_u32 s{sSrc}, s71, {j * KV_REC}")
        e.vm(f"buffer_load_dwordx4 {v(T0 + 4 * j, 4)}, v37, {W}, s{sSrc} offen sc1", "sent")
    def s2():
        yield from G.each(f"""v_lshrrev_b32 v26, 2, v{vC}
v_and_b32 v27, 3, v{vC}
v_mad_u32_u24 v28, v26, 5, v27
v_mad_u32_u24 v29, v26, 5, 4
v_cmp_eq_u32 vcc, 0, v27
v_mul_u32_u24 v30, 20, v{vG}
v_add_u32 v30, {L_KVT}, v30
v_cndmask_b32 v29, 20, v29, vcc
s_movk_i32 s60, 80
v_mad_u32_u24 v28, v28, s60, v30
v_mad_u32_u24 v29, v29, s60, v30
v_add_u32 v30, 1680, v28
v_add_u32 v31, 1680, v29
s_mul_i32 s60, s{sCG}, 5
v_add_u32 v26, s60, v{vG}
v_lshlrev_b32 v26, 8, v26
v_lshl_add_u32 v26, v{vC}, 4, v26
s_add_u32 s60, s60, 4
s_lshl_b32 s60, s60, 8
v_lshl_add_u32 v27, v{vC}, 4, s60
v_lshl_add_u32 v27, v{vG}, 2, v27
s_mul_i32 s62, s{sRT1}, 20480
s_add_u32 s62, s62, s{sLoff}
s_add_u32 s62, s62, {ws.O}
s_lshl_b32 s63, s{sX}, 1
s_add_u32 s63, s63, s{sRB}
s_lshl_b32 s63, s63, 2
s_add_u32 s63, s63, s{sW}
s_lshl_b32 s63, s63, 4
s_add_u32 s63, s63, s{sCG}
s_lshl_b32 s63, s63, 2
s_add_u32 s63, s63, s{sFoff}
s_add_u32 s63, s63, {ws.F_O}
v_mov_b32 v69, 0
v_mov_b32 v75, 0""")
    frags, fill = [], {}
    for ks in range(20):
        for b in range(3):
            r, o = G.lds(place(G_QKV, Q_FULL + ks * 2048 + 1024 * b if b < 2 else Q_HALF + ks * 512))
            if b == 2: r = "v38"
            ms = [f"{MF} {v(QAC + (2 * b + T) * 4, 4)}, {{B}}, {a((2 * ks + T) * 4, 4)}, {'0' if ks == 0 else v(QAC + (2 * b + T) * 4, 4)}" for T in range(2)]
            frags.append((r, o, None, ms))
    G.spread(fill, G.dma(sTO, G_O, range(G.opt("wo_q", 12))), 0, 2)
    G.spread(fill, [lambda j=j: gat(j) for j in range(16)], G.opt("gat0", 30), (59 - G.opt("gat0", 30)) / 15)
    G.gemm(frags, RING, 10, fill, None, s2(), 1, 2)
    G.stamp(8)
    PQ = 64
    qa = lambda T, m: QAC + (2 * (m >> 1) + T) * 4 + 2 * (m & 1)
    for T in range(2):
        for m in range(5): pk(e, "fma", qa(T, m), [("p", CSQ + 2 * m), ("b", NMT + T), ("p", qa(T, m))])
    phi(e, [(qa(T, m), ("b", RST + T), ("b", RLT + T), PQ + 6 * T + m) for T in range(2) for m in range(5)], 40)
    sentinel_retry(G, lambda: [gat(j) for j in range(16)], [T0 + j for j in range(64)], 41)
    G.stamp(9)
    for st in (32, 16, 8, 4):
        for j in range(0, st, 2): pk(e, "add", T0 + j, [("p", T0 + j), ("p", T0 + st + j)])
    e.ds(f"ds_write_b128 v39, {v(T0, 4)}")
    e.wait_ds()
    e("s_barrier")
    KW, KF = 104, 128
    for h in range(2):
        for m in range(2):
            d = KW + 6 * (2 * h + m); ad = 28 + 2 * h + m
            e.ds(f"ds_read2_b32 {v(d, 2)}, v{ad} offset0:0 offset1:1")
            e.ds(f"ds_read2_b32 {v(d + 2, 2)}, v{ad} offset0:2 offset1:3")
            e.ds(f"ds_read_b32 v{d + 4}, v{ad} offset:16", ("kw", h, m))
    for h in range(2):
        for m in range(2):
            d = KW + 6 * (2 * h + m); f = KF + 4 * (2 * h + m)
            e(f"v_mov_b32 v{f + 3}, 0")
            e.wait_ds(("kw", h, m))
            if h == 0:
                e(f"v_cvt_pk_bf16_f32 v{f}, v{d}, v{d + 1}\nv_cvt_pk_bf16_f32 v{f + 1}, v{d + 2}, v{d + 3}\nv_cvt_pk_bf16_f32 v{f + 2}, v{d + 4}, 0")
            else:
                e(f"v_cvt_pk_bf16_f32 v{f}, 0, v{d}\nv_cvt_pk_bf16_f32 v{f + 1}, v{d + 1}, v{d + 2}\nv_cvt_pk_bf16_f32 v{f + 2}, v{d + 3}, v{d + 4}")
    ON = 192
    on = lambda T, h, m: ON + ((2 * T + h) * 2 + m) * 4
    for m in (1, 0):
        for T in range(2):
            for h in range(2): e(f"{MF} {v(on(T, h, m), 4)}, {v(KF + 4 * (2 * h + m), 4)}, {v(PQ + 6 * T + 2 * h, 4)}, 0")
    for T in range(2):
        for h in range(2): e(f"v_add_f32 v{on(T, h, 1) + 1}, v{vC1E + 1}, v{on(T, h, 1) + 1}")
    for T in range(2):
        for h in range(2): e(f"v_rcp_f32 v{on(T, h, 1) + 1}, v{on(T, h, 1) + 1}")
    for T in range(2):
        for h in range(2):
            for p in range(2): pk(e, "mul", on(T, h, 0) + 2 * p, [("p", on(T, h, 0) + 2 * p), ("b", on(T, h, 1) + 1)])
            e(f"v_mul_f32 v{on(T, h, 1)}, v{on(T, h, 1)}, v{on(T, h, 1) + 1}")
        o = 40 + 6 * T
        x0, x1, y0, y1 = on(T, 0, 0), on(T, 0, 1), on(T, 1, 0), on(T, 1, 1)
        e(f"""v_cvt_pk_bf16_f32 v{o}, v{x0}, v{x0 + 1}
v_cvt_pk_bf16_f32 v{o + 1}, v{x0 + 2}, v{x0 + 3}
v_cvt_pk_bf16_f32 v{o + 2}, v{x1}, v{y0}
v_cvt_pk_bf16_f32 v{o + 3}, v{y0 + 1}, v{y0 + 2}
v_cvt_pk_bf16_f32 v{o + 4}, v{y0 + 3}, v{y1}
s_add_u32 s60, s62, {20480 * T}""")
        e.vm(f"buffer_store_dwordx4 {v(o, 4)}, v26, {W}, s60 offen", "ost")
        e.vm(f"buffer_store_dword v{o + 4}, v27, {W}, s60 offen", "ost")
    steps = G.dma(sTO, G_O, range(G.opt("wo_q", 12), 25)) + G.dma(sTI, G_IN, range(G.opt("win_p1", 6)))
    n0 = G.opt("pre_flag", 6)
    for st in steps[:n0]: st()
    e.wait_vm("ost")
    G.flag("s63", True)
    G.stamp(10)
    for st in steps[n0:]: st()

def proj(G, second):
    e, ws = G.e, G.ws
    nks = 24 if second else 20
    ACC, RING = 40, 104
    e(f"""s_lshl_b32 s66, s{sX}, 2
s_add_u32 s66, s66, s{sRQ}
s_lshl_b32 s66, s66, 1
s_lshr_b32 s60, s{sW}, 1
s_add_u32 s66, s66, s60
s_lshl_b32 s63, s66, 6
s_add_u32 s63, s63, s{sFoff}
s_add_u32 s63, s63, {ws.F_U if second else ws.F_O}
v_lshlrev_b32 v26, 2, v{vLane}
s_mul_i32 s64, s{sRT2}, {nks * 1024}
s_add_u32 s64, s64, s{sLoff}
s_add_u32 s64, s64, {ws.U if second else ws.O}""")
    for j in range(10):
        e(f"v_lshlrev_b32 v{ACC + 2 * j}, 16, v{vXR + j}\nv_and_b32 v{ACC + 2 * j + 1}, 0xffff0000, v{vXR + j}")
    G.poll(26, "s63", "0xffff", True)
    G.stamp(20 if second else 11)
    AL = a_loads(G, 64, 1, nks, lambda ks, T: ks * 1024)
    D = 8
    for ks in range(D): AL[ks]()
    nxt = ws.LSTR if second else 0
    def s1():
        if second:
            yield from G.each(f"s_mul_i32 s67, s{sRT2}, 20480\nv_mov_b32 v27, v{vXa}\nv_mov_b32 v28, v{vXb}")
        else:
            yield from G.each(f"""s_lshr_b32 s67, s{sRT2}, 1
s_mul_i32 s67, s67, 40960
v_bfe_u32 v29, v{vC}, 2, 1
v_lshlrev_b32 v29, 10, v29
v_lshrrev_b32 v30, 3, v{vC}
v_lshl_add_u32 v29, v30, 6, v29
v_and_b32 v30, 3, v{vC}
v_lshl_add_u32 v29, v30, 4, v29
s_and_b32 s60, s{sW}, 1
s_lshl_b32 s60, s60, 7
v_add_u32 v29, s60, v29
v_and_b32 v30, 0xfc00, v{vXa}
v_and_b32 v27, 0x300, v{vXa}
v_lshl_add_u32 v27, v30, 1, v27
v_add_u32 v27, v27, v29
v_and_b32 v30, 0xfc00, v{vXb}
v_and_b32 v28, 0x308, v{vXb}
v_lshl_add_u32 v28, v30, 1, v28
v_add_u32 v28, v28, v29""")
        yield from G.each(f"""s_add_u32 s67, s67, s{sLoff}
s_add_u32 s67, s67, {(ws.X0 if second else ws.X1) + nxt}
s_lshl_b32 s68, s{sRT2}, 10
s_lshl_b32 s61, s{sCT}, 7
s_add_u32 s68, s68, s61
s_add_u32 s68, s68, s{sLoff}
s_add_u32 s68, s68, {(ws.ST0 if second else ws.ST1) + nxt}
s_lshl_b32 s63, s66, 3
s_add_u32 s63, s63, s{sCT}
s_lshl_b32 s63, s63, 1
s_and_b32 s60, s{sW}, 1
s_add_u32 s63, s63, s60
s_lshl_b32 s63, s63, 2
s_add_u32 s63, s63, {ws.F_X2 if second else ws.F_X1}""")
        if not second: yield from G.each(f"s_add_u32 s63, s63, s{sFoff}")
    frags, fill = [], {}
    for ks in range(nks):
        for b in range(5):
            r, o = G.lds(place(G_OUT if second else G_O, ks * 5120 + 1024 * b))
            frags.append((r, o, ("A", ks) if b == 0 else None, [f"{MF} {v(ACC + 4 * b, 4)}, {{B}}, {a(4 * ks, 4)}, {v(ACC + 4 * b, 4)}"]))
        if ks + D < nks: fill.setdefault(5 * ks + 1, []).append(AL[ks + D])
    if not second:
        G.spread(fill, G.dma(sTI, G_IN, range(G.opt("win_p1", 6), 13)), 66, 4)
    G.gemm(frags, RING, 12, fill, {0: lambda: e("s_barrier")}, s1(), 1, 60)
    G.stamp(21 if second else 12)
    for j in range(10): e(f"v_cvt_pk_bf16_f32 v{vXR + j}, v{ACC + 2 * j}, v{ACC + 2 * j + 1}")
    if second:
        mid = e.newlabel("notlast")
        e(f"""s_cmp_eq_u32 s{sLay}, 1
s_cbranch_scc0 {mid}
s_mul_i32 s60, s{sRT2}, 20480
s_mul_i32 s61, s{sCT}, 160
s_add_u32 s60, s60, s61
v_mul_u32_u24 v26, 1280, v{vC}
v_lshl_add_u32 v27, v{vG}, 3, v26
v_lshl_add_u32 v26, v{vG}, 4, v26
buffer_store_dwordx4 {v(vXR, 4)}, v26, s[{OUTR}:{OUTR+3}], s60 offen
buffer_store_dwordx4 {v(vXR + 4, 4)}, v26, s[{OUTR}:{OUTR+3}], s60 offen offset:64
buffer_store_dwordx2 {v(vXR + 8, 2)}, v27, s[{OUTR}:{OUTR+3}], s60 offen offset:128
s_branch LFIN""")
        e.label(mid)
    e.vm(f"buffer_store_dwordx4 {v(vXR, 4)}, v27, {W}, s67 offen", "xst")
    e.vm(f"buffer_store_dwordx4 {v(vXR + 4, 4)}, v27, {W}, s67 offen offset:{1024 if second else 2048}", "xst")
    e.vm(f"buffer_store_dwordx2 {v(vXR + 8, 2)}, v28, {W}, s67 offen", "xst")
    pk(e, "mul", 62, [("p", ACC), ("p", ACC)])
    pk(e, "mul", 64, [("p", ACC + 2), ("p", ACC + 2)])
    pk(e, "add", 60, [("p", ACC), ("p", ACC + 2)])
    pk(e, "add", 66, [("p", ACC + 4), ("p", ACC + 6)])
    for j in range(2, 10):
        pk(e, "fma", 62 + 2 * (j & 1), [("p", ACC + 2 * j), ("p", ACC + 2 * j), ("p", 62 + 2 * (j & 1))])
        if j > 3: pk(e, "add", 60 + 6 * (j & 1), [("p", 60 + 6 * (j & 1)), ("p", ACC + 2 * j)])
    pk(e, "add", 60, [("p", 60), ("p", 66)])
    pk(e, "add", 62, [("p", 62), ("p", 64)])
    e(f"""v_add_f32 v60, v60, v61
v_add_f32 v62, v62, v63
v_permlane16_swap_b32 v60, v62
v_add_f32 v60, v60, v62
v_mov_b32 v62, v60
v_permlane32_swap_b32 v60, v62
v_add_f32 v60, v60, v62
s_mov_b32 exec_hi, 0""")
    e.vm(f"buffer_store_dword v60, v26, {W}, s68 offen", "xst")
    e("s_mov_b64 exec, -1\ns_barrier")
    steps = G.dma(sTQ, G_QKV, range(8, 13)) if second else G.dma(sTI, G_IN, range(13, G.opt("win_p2", 21)))
    n0 = G.opt("pre_flag", 6)
    for st in steps[:n0]: st()
    e.wait_vm("xst")
    G.flag("s63", True)
    G.stamp(22 if second else 13)
    for st in steps[n0:]: st()

def wsp_reg(ks): return a(160 + 4 * ks, 4) if ks < 24 else v(224 + 4 * (ks - 24), 4)

def p3(G):
    e, ws = G.e, G.ws
    Z2, Z1, RING = 40, 64, 104
    NM, RS, CS2, NMT, RST, CS1, T0 = 144, 88, 160, 164, 166, 168, 192
    e(f"""s_lshl_b32 s63, s{sX}, 3
s_lshl_b32 s60, s{sRB}, 2
s_add_u32 s63, s63, s60
s_add_u32 s63, s63, s{sW}
s_lshl_b32 s63, s63, 6
s_add_u32 s63, s63, s{sFoff}
s_add_u32 s63, s63, {ws.F_X1}
v_lshlrev_b32 v26, 2, v{vLane}
s_lshl_b32 s62, s{sRT1}, 10
s_add_u32 s62, s62, s{sLoff}
s_add_u32 s62, s62, {ws.ST1}
s_mul_i32 s64, s{sRT1}, 20480
s_add_u32 s64, s64, s{sLoff}
s_add_u32 s64, s64, {ws.X1}""")
    G.poll(26, "s63", "0xffff", True)
    G.stamp(14)
    AL = a_loads(G, 64, 2, 20, lambda ks, T: (2 * ks + T) * 1024)
    D = 4
    AL[0]()
    e.vm(f"buffer_load_dwordx4 {v(T0, 4)}, v{vL0}, {W}, s62 offen sc1", "st")
    e.vm(f"buffer_load_dwordx4 {v(T0 + 4, 4)}, v{vL0}, {W}, s62 offen offset:1024 sc1", "st")
    for ks in range(1, D): AL[ks]()
    def s1():
        for m in range(4):
            yield from G.each(f"""v_add_u32 v26, {4 * m}, v{vG}
v_xor_b32 v26, v26, v{vC}
v_lshlrev_b32 v26, 4, v26
v_lshl_add_u32 v{100 + m}, v{vG}, 12, v26""")
        yield from G.each(f"""s_lshl_b32 s67, s{sX}, 2
s_add_u32 s67, s67, s{sRQ}
s_lshl_b32 s67, s67, 1
s_and_b32 s60, s{sW}, 1
s_add_u32 s68, s67, s60
s_xor_b32 s69, s68, 1
s_lshl_b32 s68, s68, 17
s_lshl_b32 s69, s69, 17
s_add_u32 s68, s68, s{sWK}
s_add_u32 s69, s69, s{sWK}
s_lshl_b32 s70, s{sW}, 15
v_and_b32 v26, 31, v{vLane}
v_lshrrev_b32 v27, 5, v{vLane}
v_xor_b32 v27, v27, v{vC}
v_lshlrev_b32 v27, 4, v27
v_lshl_add_u32 v27, v26, 8, v27
v_add_u32 v152, s70, v27""")
        yield from G.each("\n".join(f"v_xor_b32 v{152 + j}, {32 * j}, v152" for j in range(1, 8)))
        yield from G.row_stats(T0, T0 + 4, T0 + 8)
        yield from G.each(f"""v_lshrrev_b32 v27, 3, v{vC}
v_bfe_u32 v28, v{vC}, 2, 1
v_and_b32 v29, 3, v{vC}
v_lshl_add_u32 v29, v28, 3, v29
v_lshlrev_b32 v38, 4, v29
v_lshl_add_u32 v39, v27, 4, v29
v_lshl_add_u32 v32, v{vG}, 5, s65
v_lshl_add_u32 v31, v39, 2, s65
v_lshlrev_b32 v28, 2, v{vC}
v_add_u32 v28, {L_CSI}, v28
v_lshlrev_b32 v29, 4, v{vG}
v_add_u32 v29, {L_CSI + 192}, v29""")
        rds = []
        for T in range(2):
            rds += [f"ds_read_b128 {v(NM + 4 * T, 4)}, v32 offset:{16 * T}", f"ds_read_b128 {v(RS + 4 * T, 4)}, v32 offset:{128 + 16 * T}",
                    f"ds_read_b32 v{NMT + T}, v31 offset:{16 * T}", f"ds_read_b32 v{RST + T}, v31 offset:{128 + 16 * T}"]
        rds += [f"ds_read_b32 v{CS2 + b}, v28 offset:{64 * b}" for b in range(3)]
        rds += [f"ds_read_b128 {v(CS1 + 4 * b, 4)}, v29 offset:{64 * b}" for b in range(3)]
        for r in rds:
            e.ds(r, "cst"); yield; yield
        yield from G.each(f"""v_lshrrev_b32 v26, 3, v{vC}
v_lshlrev_b32 v26, 7, v26
v_lshl_add_u32 v26, v{vG}, 5, v26
v_bfe_u32 v27, v{vC}, 2, 1
v_lshl_add_u32 v33, v27, 4, v26
s_lshr_b32 s66, s{sRT1}, 1
s_lshl_b32 s66, s66, 12
s_add_u32 s66, s66, s{sSoff}
s_add_u32 s66, s66, {ws.S3}
s_lshl_b32 s71, s{sCG}, 8
s_add_u32 s71, s71, s66""")
    def wsp(sb, st, slot, tag):
        def f(m):
            e(f"s_add_u32 s{sSrc}, s{sb}, {m * 16384 + st * 256}\ns_add_u32 m0, s70, {slot * 8192 + m * 1024}")
            e.vm(f"buffer_load_dwordx4 v{100 + (m & 3)}, s[{WSPR}:{WSPR+3}], s{sSrc} offen lds", tag)
        return [lambda m=m: f(m) for m in range(8)]
    def wrd(st, slot):
        return [lambda j=j: e.ds(f"ds_read_b128 {wsp_reg(8 * st + j)}, v{152 + j} offset:{8192 * slot}", "wrd") for j in range(8)]
    frags, fill = [], {}
    for ks in range(20):
        for b in range(3):
            r, o = G.lds(place(G_IN, ks * 3072 + 1024 * b))
            ms = [f"{MF} {v(Z2 + (2 * b + T) * 4, 4)}, {a((2 * ks + T) * 4, 4)}, {{B}}, {'0' if ks == 0 else v(Z2 + (2 * b + T) * 4, 4)}" for T in range(2)]
            frags.append((r, o, ("A", ks) if b == 0 else None, ms))
        if ks + D < 20: fill.setdefault(3 * ks + 1, []).append(AL[ks + D])
    wp2 = G.opt("win_p2", 21)
    late = G.dma(sTI, G_IN, range(wp2, 30), "Bz1") + wsp(68, 0, 2, "wa")
    G.spread(fill, late[:12], 48, 1)
    G.gemm(frags, RING, 10, fill, {0: lambda: e("s_barrier")}, s1(), 3, 2)
    e("s_barrier")
    G.stamp(15)
    late = late[12:] + wsp(68, 1, 1, "wa")
    z2 = lambda b, T, h: Z2 + (2 * b + T) * 4 + 2 * h
    idx = [(b, T, h) for b in range(3) for T in range(2) for h in range(2)]
    e.wait_ds("cst")
    for b, T, h in idx: pk(e, "fma", z2(b, T, h), [("p", NM + 4 * T + 2 * h), ("b", CS2 + b), ("p", z2(b, T, h))])
    its = [(z2(b, T, h), ("p", RS + 4 * T + 2 * h)) for b, T, h in idx]
    for i in range(0, 12, 2):
        for st in late[:3]: st()
        late = late[3:]
        gelu(e, its[i:i + 2], T0)
    assert not late
    S, Q, O8 = T0, T0 + 8, T0 + 16
    TH = [(T, h) for T in range(2) for h in range(2)]
    for T, h in TH: pk(e, "add", S + 4 * T + 2 * h, [("p", z2(0, T, h)), ("p", z2(1, T, h))])
    for T, h in TH: pk(e, "mul", Q + 4 * T + 2 * h, [("p", z2(0, T, h)), ("p", z2(0, T, h))])
    for T, h in TH: pk(e, "add", S + 4 * T + 2 * h, [("p", S + 4 * T + 2 * h), ("p", z2(2, T, h))])
    for b in (1, 2):
        for T, h in TH: pk(e, "fma", Q + 4 * T + 2 * h, [("p", z2(b, T, h)), ("p", z2(b, T, h)), ("p", Q + 4 * T + 2 * h)])
    for j in range(8): e(f"v_add_f32_dpp v{O8 + j}, v{S + j}, v{S + j} row_ror:8 row_mask:0xf bank_mask:0x3")
    for j in range(8): e(f"v_add_f32_dpp v{O8 + j}, v{Q + j}, v{Q + j} row_ror:8 row_mask:0xf bank_mask:0xc")
    for j in range(4): e(f"v_add_f32_dpp v{S + j}, v{O8 + j}, v{O8 + j} row_half_mirror row_mask:0xf bank_mask:0x5")
    for j in range(4): e(f"v_add_f32_dpp v{S + j}, v{O8 + 4 + j}, v{O8 + 4 + j} row_half_mirror row_mask:0xf bank_mask:0xa")
    for j in range(4): e(f"v_add_f32_dpp v{S + j}, v{S + j}, v{S + j} quad_perm:[1,0,3,2] row_mask:0xf bank_mask:0xf")
    for j in range(4): e(f"v_add_f32_dpp v{S + j}, v{S + j}, v{S + j} quad_perm:[2,3,0,1] row_mask:0xf bank_mask:0xf")
    fast, done = e.newlabel("s3f"), e.newlabel("s3d")
    e(f"""s_mov_b32 exec_lo, 0x11111111
s_mov_b32 exec_hi, 0x11111111
s_cmp_eq_u32 s{sMode}, 0
s_cbranch_scc1 {fast}
buffer_store_dwordx4 {v(S, 4)}, v33, {W}, s71 offen sc1
s_branch {done}""")
    e.label(fast)
    e.vm(f"buffer_store_dwordx4 {v(S, 4)}, v33, {W}, s71 offen")
    e.label(done)
    e("s_mov_b64 exec, -1")
    G.stamp(16)
    GS = 208
    def gat():
        for m in range(4): e.vm(f"buffer_load_dwordx4 {v(GS + 4 * m, 4)}, v{vL0}, {W}, s66 offen offset:{1024 * m} sc1", "sent")
    def s2():
        yield from G.each(f"""v_lshrrev_b32 v27, 3, v{vC}
v_mul_u32_u24 v27, 24576, v27
v_add_u32 v27, v27, v38
s_mul_i32 s60, s{sCG}, 6
v_add_u32 v26, s60, v{vG}
v_lshl_add_u32 v26, v26, 8, v27
v_lshrrev_b32 v28, 1, v{vG}
v_add3_u32 v28, v28, s60, 4
v_lshl_add_u32 v27, v28, 8, v27
v_and_b32 v28, 1, v{vG}
v_lshl_add_u32 v27, v28, 3, v27
s_mul_i32 s72, s{sRT1}, 24576
s_add_u32 s72, s72, s{sLoff}
s_add_u32 s72, s72, {ws.Z1}
v_add_u32 v29, s65, v{vL0}
v_lshrrev_b32 v30, 1, v{vG}
v_mul_u32_u24 v30, 3072, v30
v_and_b32 v31, 1, v{vG}
v_lshl_add_u32 v30, v31, 9, v30
v_lshl_add_u32 v30, v{vC}, 4, v30
s_lshr_b32 s61, s{sCG}, 1
s_lshl_b32 s61, s61, 7
s_add_u32 s61, s61, s{sRT1}
s_mul_i32 s61, s61, 3072
s_add_u32 s61, s61, s{sLoff}
s_add_u32 s61, s61, {ws.ZT}
s_and_b32 s62, s{sCG}, 1
s_mul_i32 s62, s62, 3""")
        for b in range(3):
            yield from G.each(f"""s_add_u32 s60, s62, {b}
s_lshr_b32 s{73 + b}, s60, 1
s_lshl_b32 s{73 + b}, s{73 + b}, 10
s_and_b32 s60, s60, 1
s_lshl_b32 s60, s60, 8
s_add_u32 s{73 + b}, s{73 + b}, s60
s_add_u32 s{73 + b}, s{73 + b}, s61""")
        yield from G.each(f"""s_lshl_b32 s63, s{sX}, 5
s_add_u32 s63, s63, s{sL}
s_lshl_b32 s63, s63, 7
s_add_u32 s63, s63, s{sFoff}
s_add_u32 s63, s63, {ws.F_Z}""")
        e(f"s_cmp_eq_u32 s{sW}, 0\ns_cselect_b32 s63, s63, {OOB:#x}")
        yield
    frags, fill = [], {}
    for ks in range(20):
        for b in range(3):
            r, o = G.lds(place(G_IN, 61440 + ks * 3072 + 1024 * b))
            ms = [f"{MF} {v(Z1 + (2 * b + T) * 4, 4)}, {{B}}, {a((2 * ks + T) * 4, 4)}, {'0' if ks == 0 else v(Z1 + (2 * b + T) * 4, 4)}" for T in range(2)]
            frags.append((r, o, None, ms))
    w0 = G.opt("w_c0", 4)
    fill[w0] = [lambda: e.wait_vm("wa")]
    G.spread(fill, wrd(0, 2) + wrd(1, 1), w0, 1)
    fill.setdefault(w0 + 18, []).append(lambda: e.wait_ds("wrd"))
    G.spread(fill, wsp(68, 2, 2, "wb") + wsp(68, 3, 1, "wb"), w0 + 18, 1.5)
    fill.setdefault(G.opt("s3gat", 50), []).append(gat)
    G.gemm(frags, RING, 10, fill, {4 * wp2 - 60: G.bar("Bz1")}, s2(), 1, 22)
    z1 = lambda b, T, h: Z1 + (2 * b + T) * 4 + 2 * h
    e.wait_vm("wb")
    for st in wrd(2, 2) + wrd(3, 1):
        st()
        if len(e.lgq) >= 14: e.wait_ds()
    for b, T, h in idx: pk(e, "fma", z1(b, T, h), [("p", CS1 + 4 * b + 2 * h), ("b", NMT + T), ("p", z1(b, T, h))])
    e.wait_ds()
    e("s_barrier")
    G.stamp(17)
    r2 = [f for st in range(4) for f in wsp(69, st, st, "wsp")]
    its = [(z1(b, T, h), ("b", RST + T)) for b, T, h in idx]
    for i in range(0, 12, 2):
        r2[i](); r2[i + 1]()
        gelu(e, its[i:i + 2], T0)
    for T in range(2):
        o = T0 + 6 * T
        for b in range(3):
            for h in range(2): e(f"v_cvt_pk_bf16_f32 v{o + 2 * b + h}, v{z1(b, T, h)}, v{z1(b, T, h) + 1}")
        e.vm(f"buffer_store_dwordx4 {v(o, 4)}, v26, {W}, s72 offen offset:{64 * T}", "zst")
        e.vm(f"buffer_store_dwordx2 {v(o + 4, 2)}, v27, {W}, s72 offen offset:{64 * T}", "zst")
    sentinel_retry(G, gat, [GS + j for j in range(16)], 64)
    for h in range(2):
        pk(e, "add", GS + 2 * h, [("p", GS + 2 * h), ("p", GS + 4 + 2 * h)])
        pk(e, "add", GS + 8 + 2 * h, [("p", GS + 8 + 2 * h), ("p", GS + 12 + 2 * h)])
    for h in range(2): pk(e, "add", GS + 2 * h, [("p", GS + 2 * h), ("p", GS + 8 + 2 * h)])
    run(G.xreduce([GS + j for j in range(4)], GS + 4))
    for j in range(4): e(f"v_mov_b32_dpp v{GS + 4 + j}, v{GS + j} row_ror:8 row_mask:0xf bank_mask:0xf")
    run(G.moments(GS, 768))
    for j in range(4): e(f"v_mul_f32 v{GS + j}, v{GS + j}, v{GS + 4 + j}")
    e("s_mov_b64 exec, 0xff")
    e.ds(f"ds_write_b128 v29, {v(GS, 4)}")
    e.ds(f"ds_write_b128 v29, {v(GS + 4, 4)} offset:128")
    e("s_mov_b64 exec, -1")
    for T in range(2):
        e.ds(f"ds_read_b128 {v(NM + 4 * T, 4)}, v32 offset:{16 * T}")
        e.ds(f"ds_read_b128 {v(RS + 4 * T, 4)}, v32 offset:{128 + 16 * T}")
    e.wait_ds()
    for b in range(3):
        o = 64 + 4 * b
        for T, h in TH: pk(e, "fma", z2(b, T, h), [("p", z2(b, T, h)), ("p", RS + 4 * T + 2 * h), ("p", NM + 4 * T + 2 * h)])
        for T, h in TH: e(f"v_cvt_pk_bf16_f32 v{o + 2 * T + h}, v{z2(b, T, h)}, v{z2(b, T, h) + 1}")
        e.vm(f"buffer_store_dwordx4 {v(o, 4)}, v30, {W}, s{73 + b} offen sc1", "zst")
    for st in r2[12:22]: st()
    e.wait_vm("zst")
    sk = e.newlabel("nowb")
    e(f"s_cmp_eq_u32 s{sMode}, 0\ns_cbranch_scc1 {sk}\nbuffer_wbl2 sc1\ns_waitcnt vmcnt(0)")
    e.label(sk)
    e("s_barrier")
    G.flag("s63", False)
    G.stamp(18)
    for st in r2[22:]: st()

def p4(G):
    e, ws = G.e, G.ws
    ACC, WB, ZL, ZU, BI = 40, 136, 160, 172, 196
    acc = lambda fb, tb: ACC + (2 * fb + tb) * 16
    e(f"""v_lshrrev_b32 v26, 2, v{vLane}
s_lshl_b32 s60, s{sW}, 1
v_add_u32 v26, s60, v26
v_mov_b32 v27, s{sX}
v_cmp_gt_u32 vcc, 8, v{vLane}
v_cndmask_b32 v26, v27, v26, vcc
v_bfe_u32 v27, v{vLane}, 1, 1
s_lshr_b32 s60, s{sRQ}, 1
v_mov_b32 v28, s60
v_cndmask_b32 v27, v28, v27, vcc
v_lshlrev_b32 v26, 5, v26
v_lshl_add_u32 v26, v27, 4, v26
v_and_b32 v27, 1, v{vLane}
s_lshl_b32 s60, s{sCT}, 1
v_add3_u32 v26, v26, v27, s60
v_lshlrev_b32 v26, 7, v26
s_add_u32 s63, s{sFoff}, {ws.F_Z}
s_lshr_b32 s60, s{sW}, 1
s_lshl_b32 s60, s60, 8
v_xor_b32 v30, s60, v{vL0}
s_lshl_b32 s64, s{sCT}, 7
s_lshl_b32 s60, s{sW}, 5
s_add_u32 s64, s64, s60
s_mul_i32 s64, s64, 3072
s_add_u32 s64, s64, s{sLoff}
s_add_u32 s64, s64, {ws.ZT}
v_bfe_u32 v27, v{vLane}, 4, 1
v_mul_u32_u24 v31, 24576, v27
v_lshrrev_b32 v27, 5, v{vLane}
s_and_b32 s60, s{sW}, 2
v_add_u32 v27, s60, v27
v_lshl_add_u32 v31, v27, 8, v31
v_lshl_add_u32 v31, v{vC}, 4, v31
s_lshl_b32 s67, s{sX}, 2
s_add_u32 s67, s67, s{sRQ}
s_lshl_b32 s67, s67, 1
s_and_b32 s60, s{sW}, 1
s_add_u32 s67, s67, s60
s_lshl_b32 s66, s67, 6
s_mul_i32 s65, s67, 49152
s_mul_i32 s60, s{sCT}, 3072
s_add_u32 s65, s65, s60
s_add_u32 s65, s65, s{sLoff}
v_and_b32 v27, 31, v{vLane}
v_lshlrev_b32 v27, 1, v27""")
    for rel in range(4):
        e(f"s_xor_b32 s60, s{sW}, {rel}\ns_lshl_b32 s61, s60, 15\ns_add_u32 s61, s61, 16384\nv_add_u32 v{32 + rel}, s61, v{vL0}")
        if rel in (0, 3): e(f"s_lshl_b32 s61, s60, 11\nv_add_u32 v{36 + (rel & 1)}, s61, v{vL2}")
    G.poll(26, "s63", "0x3ff", True)
    G.stamp(19)
    D = G.opt("p4d", 13)
    def zl(ks):
        e(f"s_add_u32 s{sSrc}, s64, {3072 * ks}")
        for fb in range(3):
            e.vm(f"buffer_load_dwordx4 {a(((ks % D) * 3 + fb) * 4, 4)}, v30, {W}, s{sSrc} offen offset:{1024 * fb} sc1", ("Z", ks))
    for ks in range(D - 1): zl(ks)
    def rd(ks): e.ds(f"ds_read_b128 {v(WB + 4 * (ks & 3), 4)}, v{152 + (ks & 7)} offset:{8192 * (ks >> 3)}", ("W", ks))
    for ks in range(3): rd(ks)
    def late():
        e(f"s_add_u32 s60, s65, {ws.Z1}")
        for fb in range(3): e.vm(f"buffer_load_dwordx4 {v(ZL + 4 * fb, 4)}, v31, {W}, s60 offen offset:{1024 * fb} sc1", "z1")
        e.vm(f"buffer_load_ushort v{BI}, v27, s[{BSPR}:{BSPR+3}], s66 offen", "z1")
    early = G.dma(sTW, G_OUT, range(20))
    k0 = max(33 - D, 18)
    def unpack():
        e.wait_vm("z1")
        for j in range(12):
            yield from G.each(f"v_lshlrev_b32 v{ZU + 2 * j}, 16, v{ZL + j}\nv_and_b32 v{ZU + 2 * j + 1}, 0xffff0000, v{ZL + j}")
        yield from G.each(f"""v_lshlrev_b32 v{BI}, 16, v{BI}
s_lshl_b32 s63, s67, 3
s_add_u32 s63, s63, s{sCT}
s_lshl_b32 s63, s63, 1
s_lshr_b32 s60, s{sW}, 1
s_add_u32 s63, s63, s60
s_lshl_b32 s63, s63, 2
s_add_u32 s63, s63, s{sFoff}
s_add_u32 s63, s63, {ws.F_U}
s_add_u32 s65, s65, {ws.U}""")
    un = unpack()
    for ks in range(32):
        e.wait_vm(("Z", ks))
        for fb in range(3):
            z = a(((ks % D) * 3 + fb) * 4, 4)
            e(f"{MF32} {v(acc(fb, 0), 16)}, {z}, {wsp_reg(ks)}, {'0' if ks == 0 else v(acc(fb, 0), 16)}")
            if fb == 0:
                if ks + D - 1 < 32: zl(ks + D - 1)
                if ks == k0: late(); e("s_barrier")
                e.wait_ds(("W", ks))
            if ks > k0 and fb > 0 and early: early.pop(0)()
            if ks >= 29:
                for _ in range(4): next(un, None)
            e(f"{MF32} {v(acc(fb, 1), 16)}, {z}, {v(WB + 4 * (ks & 3), 4)}, {'0' if ks == 0 else v(acc(fb, 1), 16)}")
        if ks + 3 < 32: rd(ks + 3)
    run(un)
    for st in early: st()
    e("s_barrier")
    G.stamp(23)
    def red(rel, n, base, extra):
        m = (rel - 1) * 6 + n
        return (base, m * 1024) if m < 16 else (extra, (m - 16) * 1024)
    for rel in range(1, 4):
        for n in range(6):
            r, o = red(rel, n, 32 + rel, 37)
            e.ds(f"ds_write_b128 v{r}, {v(acc(n >> 1, rel & 1) + 8 * (rel >> 1) + 4 * (n & 1), 4)} offset:{o}")
            if len(e.lgq) >= 14: e.wait_ds()
    for fb in range(3):
        for j in range(4):
            d = acc(fb, 0) + 2 * j
            pk(e, "add", d, [("p", d), ("b", BI)])
    e.wait_ds()
    e("s_barrier")
    dst = lambda rel, n: (200 + 4 * n) if rel == 1 else (224 + 4 * n) if rel == 2 else (acc(0, 1) + 4 * n if n < 4 else acc(1, 1) + 4 * (n - 4))
    for n in range(6):
        for rel in range(1, 4):
            r, o = red(rel, n, 32, 36)
            e.ds(f"ds_read_b128 {v(dst(rel, n), 4)}, v{r} offset:{o}", ("R", n >> 1))
        if n == 4: e.wait_ds(("R", 0))
    for fb in range(3):
        e.wait_ds(("R", fb))
        if fb == 2: e("s_barrier")
        for rel in range(1, 4):
            for j in range(4):
                d = acc(fb, 0) + 2 * j
                pk(e, "add", d, [("p", d), ("p", dst(rel, 2 * fb + (j >> 1)) + 2 * (j & 1))])
        for j in range(4):
            d = acc(fb, 0) + 2 * j
            pk(e, "mul", d, [("p", d), ("p", ZU + 8 * fb + 2 * j)])
        for j in range(4): e(f"v_cvt_pk_bf16_f32 v{136 + 4 * fb + j}, v{acc(fb, 0) + 2 * j}, v{acc(fb, 0) + 2 * j + 1}")
        e.vm(f"buffer_store_dwordx4 {v(136 + 4 * fb, 4)}, v31, {W}, s65 offen offset:{1024 * fb}", "ust")
    steps = G.dma(sTW, G_OUT, range(20, 30)) + G.dma(sTQ, G_QKV, range(8))
    n0 = G.opt("pre_flag", 6)
    for st in steps[:n0]: st()
    e.wait_vm("ust")
    G.flag("s63", True)
    G.stamp(24)
    for st in steps[n0:]: st()

def body(G):
    e, ws = G.e, G.ws
    e("s_branch LP1_GO")
    p1(G)
    if G.finish(1): return
    proj(G, False)
    if G.finish(2): return
    p3(G)
    if G.finish(3): return
    p4(G)
    if G.finish(4): return
    proj(G, True)
    if G.finish(5): return
    e(f"""s_mov_b32 s{sLay}, 1
s_mov_b32 s{sLoff}, {ws.LSTR}
s_mov_b32 s{sFoff}, {ws.FLS}
s_mov_b32 s{sKoff}, {ws.KVP_L}
s_mov_b32 s{sSoff}, {ws.S3_L}""")
    if G.prof: e("s_lshl_b64 s[98:99], s[98:99], 30")
    e("s_branch LP1_WAIT")
```

```python
import sys, struct, math
from kemit import *
from layout import *

NAME = "interleave_layers__linear_attn_block__mixer_gmlp__prompt_kernel"
def f2u(x): return struct.unpack("<I", struct.pack("<f", x))[0]
LOG2E = 1.4426950408889634

WSR, XR_, QKVR, WOR, WINR, WSPR, BSPR, WOUTR, OUTR, DBGR = 4, 8, 12, 16, 20, 24, 28, 32, 36, 40
sW, sX, sL, sMode, sLay, sLoff, sFoff, sKoff, sSoff = range(44, 53)
sRB, sCG, sRQ, sCT, sRT1, sRT2, sXCC = range(53, 60)
sSrc, sWK, sSpin = 80, 81, 82
sTQ, sTO, sTI, sTW = 94, 95, 96, 97
vL0, vL1, vL2 = 1, 2, 3
vXR = 4
vPROF, vLane = 14, 15
vK01, vC1E = 16, 18
vXa, vXb, vG, vC = 20, 21, 22, 23
SPIN_MAX = 60000

class Gen:
    def __init__(self, stop=99, reuse=False, prof=False, force_slow=False, opts=None):
        self.opts = opts or {}
        self.e = Emit(); self.stop = stop; self.prof = prof; self.force_slow = force_slow
        self.ws = WS(reuse)

    def opt(self, k, d): return self.opts.get(k, d)

    def srd(self, d, base, nbytes):
        self.e(f"s_mov_b32 s{d}, s{base}\ns_and_b32 s{d+1}, s{base+1}, 0xffff\ns_mov_b32 s{d+2}, {nbytes:#x}\ns_mov_b32 s{d+3}, 0x20000")

    def stamp(self, i):
        if not self.prof: return
        e = self.e
        e.wait_ds()
        e(f"s_memtime s[100:101]\ns_waitcnt lgkmcnt(0)\ns_lshl_b64 exec, s[98:99], {i}\nv_mov_b32 v{vPROF}, s100\ns_mov_b64 exec, -1")

    def sdiv(self, d, x, div, maxx):
        mul, sh = magic(div, maxx)
        self.e(f"s_mul_i32 s{d}, s{x}, {mul}\ns_lshr_b32 s{d}, s{d}, {sh}")

    def lds(self, addr):
        k = addr >> 16
        return f"v{vL0 + k}", addr & 0xffff

    def poll(self, vaddr, soff, mask, local):
        e = self.e
        top, done = e.newlabel("poll"), e.newlabel("pdone")
        e(f"s_mov_b64 exec, {mask}\ns_mov_b32 s{sSpin}, 0")
        e.label(top)
        e(f"""buffer_load_dword v24, v{vaddr}, s[{WSR}:{WSR+3}], {soff} offen sc1
s_add_u32 s{sSpin}, s{sSpin}, 1
s_waitcnt vmcnt(0)
v_cmp_eq_u32 vcc, 1, v24
s_cmp_eq_u64 vcc, exec
s_cbranch_scc1 {done}
s_cmp_lt_u32 s{sSpin}, {SPIN_MAX}
s_cbranch_scc1 {top}
s_branch LEND""")
        e.label(done)
        e("s_mov_b64 exec, -1")
        e.vmq = []
        if local:
            sk = e.newlabel("noinv")
            e(f"s_cmp_eq_u32 s{sMode}, 0\ns_cbranch_scc1 {sk}\nbuffer_inv sc1\ns_waitcnt vmcnt(0)")
            e.label(sk)

    def flag(self, soff, local):
        e = self.e
        e(f"v_mov_b32 v24, 1\nv_mov_b32 v25, 0\ns_mov_b64 exec, 1")
        if local:
            fast, done = e.newlabel("ffast"), e.newlabel("fdone")
            e(f"""s_cmp_eq_u32 s{sMode}, 0
s_cbranch_scc1 {fast}
buffer_wbl2 sc1
s_waitcnt vmcnt(0)
buffer_store_dword v24, v25, s[{WSR}:{WSR+3}], {soff} offen sc1
s_branch {done}""")
            e.label(fast)
            e.vm(f"buffer_store_dword v24, v25, s[{WSR}:{WSR+3}], {soff} offen", "flag")
            e.label(done)
        else:
            e.vm(f"buffer_store_dword v24, v25, s[{WSR}:{WSR+3}], {soff} offen sc1", "flag")
        e("s_mov_b64 exec, -1")

    def dma(self, stile, gmap, grans, tag="dma"):
        e = self.e
        def step(g):
            e(f"s_add_u32 s{sSrc}, s{stile}, {g * 4096}\ns_add_u32 m0, s{sWK}, {gmap[g] * 4096}")
            e.vm(f"buffer_load_dwordx4 v{vL0}, s[{WSR}:{WSR+3}], s{sSrc} offen sc1 lds", tag)
        return [lambda g=g: step(g) for g in grans]

    def gemm(self, frags, ring, R, fill=None, pre=None, stream=None, rate=2, sfirst=0):
        e = self.e
        fill = fill or {}; pre = pre or {}
        n = len(frags)
        def rd(j):
            if j in pre: pre[j]()
            e.ds(f"ds_read_b128 {v(ring + 4 * (j % R), 4)}, {frags[j][0]} offset:{frags[j][1]}", ("B", j))
        for j in range(min(R - 1, n)): rd(j)
        for j in range(n):
            if frags[j][2] is not None: e.wait_vm(frags[j][2])
            e.wait_ds(("B", j))
            for i, m in enumerate(frags[j][3]):
                e(m.format(B=v(ring + 4 * (j % R), 4)))
                if i == 0 and stream is not None and j >= sfirst:
                    for _ in range(rate): next(stream, None)
            if j + R - 1 < n: rd(j + R - 1)
            for f in fill.get(j, []): f()
        if stream is not None:
            for _ in stream: pass

    def each(self, text):
        for line in text.strip("\n").split("\n"):
            self.e(line); yield

    def bar(self, tag):
        return lambda: (self.e.wait_vm(tag), self.e("s_barrier"))

    def spread(self, fill, steps, first, every):
        for i, st in enumerate(steps): fill.setdefault(first + int(i * every), []).append(st)

    def xreduce(self, regs, tmp):
        for op in ("v_permlane16_swap_b32", "v_permlane32_swap_b32"):
            yield from self.each("\n".join(f"v_mov_b32 v{tmp + i}, v{r}" for i, r in enumerate(regs)))
            yield from self.each("\n".join(f"{op} v{r}, v{tmp + i}" for i, r in enumerate(regs)))
            yield from self.each("\n".join(f"v_add_f32 v{r}, v{r}, v{tmp + i}" for i, r in enumerate(regs)))

    def moments(self, t, n):
        J = range(4)
        yield from self.each(f"s_mov_b32 s60, {f2u(-1.0 / n):#x}\ns_mov_b32 s61, {f2u(1.0 / n):#x}")
        yield from self.each("\n".join(
            [f"v_mul_f32 v{t + j}, s60, v{t + j}" for j in J] + [f"v_mul_f32 v{t + 8 + j}, v{t + j}, v{t + j}" for j in J] +
            [f"v_fma_f32 v{t + 4 + j}, v{t + 4 + j}, s61, -v{t + 8 + j}" for j in J] + [f"v_max_f32 v{t + 4 + j}, 0, v{t + 4 + j}" for j in J] +
            [f"v_add_f32 v{t + 4 + j}, {f2u(1e-5):#x}, v{t + 4 + j}" for j in J] + [f"v_rsq_f32 v{t + 4 + j}, v{t + 4 + j}" for j in J]))

    def row_stats(self, ra, rb_, t):
        e = self.e
        e.wait_vm("st")
        for j in range(4): yield from self.each(f"v_add_f32_dpp v{t + j}, v{ra + j}, v{ra + j} row_ror:8 row_mask:0xf bank_mask:0x3")
        for j in range(4): yield from self.each(f"v_add_f32_dpp v{t + j}, v{rb_ + j}, v{rb_ + j} row_ror:8 row_mask:0xf bank_mask:0xc")
        yield from self.xreduce([t + j for j in range(4)], t + 4)
        for j in range(4): yield from self.each(f"v_mov_b32_dpp v{t + 4 + j}, v{t + j} row_shl:4 row_mask:0xf bank_mask:0xf")
        yield from self.moments(t, 640)
        yield from self.each(f"""v_lshrrev_b32 v{t + 8}, 3, v{vC}
v_and_b32 v{t + 9}, 3, v{vC}
v_lshlrev_b32 v{t + 9}, 4, v{t + 9}
v_lshl_add_u32 v{t + 8}, v{t + 8}, 6, v{t + 9}
s_lshl_b32 s65, s{sW}, 8
s_add_u32 s65, s65, {L_ST}
v_add_u32 v{t + 8}, s65, v{t + 8}""")
        e("s_mov_b64 exec, 0x0f0f")
        e.ds(f"ds_write_b128 v{t + 8}, {v(t, 4)}")
        e.ds(f"ds_write_b128 v{t + 8}, {v(t + 4, 4)} offset:128", "stw")
        e("s_mov_b64 exec, -1")
        yield

    def finish(self, phase):
        if self.stop == phase:
            self.e("s_branch LFIN")
            return True
        return False

    def gather(self, srd, voff, sbase, rowb, dst, tag, extra=None):
        e = self.e
        for j in range(8):
            va = voff
            if extra: va = extra(j)
            else: e(f"s_add_u32 s60, s{sbase}, {j * rowb}")
            e.vm(f"buffer_load_ushort v{dst + j}, v{va}, s[{srd}:{srd+3}], s60 offen", tag)

    def merge(self, src, dst):
        for j in range(4): self.e(f"v_lshl_or_b32 v{dst + j}, v{src + 2 * j + 1}, 16, v{src + 2 * j}")

    def paircol(self, d, sbase, sblk, last):
        self.e(f"""s_lshr_b32 s61, s{sblk}, 1
s_lshl_b32 s61, s61, 5
s_add_u32 s60, s{sbase}, s61
s_and_b32 s61, s{sblk}, 1
s_lshl_b32 s61, s61, 2
s_add_u32 s60, s60, s61
s_cmp_eq_u32 s{sblk}, {last}
s_cselect_b32 s62, 4, 8
v_lshrrev_b32 v40, 2, v{vC}
v_and_b32 v{d}, 3, v{vC}
v_mad_u32_u24 v{d}, v40, s62, v{d}
v_add_lshl_u32 v{d}, v{d}, s60, 1""")

    def phase0(self):
        e, ws = self.e, self.ws
        W = f"s[{WSR}:{WSR+3}]"
        MF = "v_mfma_f32_16x16x32_bf16"
        e(f"""s_cmp_ge_u32 s2, 256
s_cbranch_scc1 LEND
s_load_dwordx16 s[64:79], s[0:1], 0
s_load_dwordx4 s[88:91], s[0:1], 64
s_load_dwordx2 s[92:93], s[0:1], 80
s_getpc_b64 s[60:61]
s_lshr_b32 s62, s2, 3
s_lshl_b32 s62, s62, 4
v_lshrrev_b32 v24, 6, v0
v_and_b32 v25, 3, v0
v_lshl_add_u32 v25, v24, 2, v25
v_add_lshl_u32 v25, v25, s62, 7
v_min_u32 v25, LCODE_END - {NAME} - 64, v25""")
        e.vm("global_load_dword v26, v25, s[60:61]")
        if self.prof: e("s_mov_b64 s[98:99], 1\nv_mov_b32 v14, 0")
        e(f"""s_getreg_b32 s{sXCC}, hwreg(HW_REG_XCC_ID, 0, 4)
v_and_b32 v{vLane}, 63, v0
v_lshlrev_b32 v{vL0}, 4, v{vLane}
v_readfirstlane_b32 s{sW}, v24
v_add_u32 v{vL1}, 0x10000, v{vL0}
v_add_u32 v{vL2}, 0x20000, v{vL0}
v_lshrrev_b32 v{vG}, 4, v{vLane}
v_and_b32 v{vC}, 15, v{vLane}
v_mov_b32 v{vK01}, {f2u(-2 * 0.7978845608028654 * LOG2E):#x}
v_mov_b32 v{vK01 + 1}, {f2u(-2 * 0.7978845608028654 * 0.044715 * LOG2E):#x}
v_mov_b32 v{vC1E}, 1.0
v_mov_b32 v{vC1E + 1}, {f2u(1e-6):#x}
v_mov_b32 v36, {OOB:#x}
s_mov_b32 s{sLay}, 0
s_mov_b32 s{sLoff}, 0
s_mov_b32 s{sFoff}, 0
s_mov_b32 s{sKoff}, 0
s_mov_b32 s{sSoff}, 0
s_lshl_b32 s{sWK}, s{sW}, 10""")
        for j in range(4): e(f"v_mov_b32 v{32 + j}, 0\nv_mov_b32 v{28 + j}, -1\nv_mov_b32 v{116 + j}, 0x3f803f80")
        e(f"""s_mul_i32 s60, s2, 384
s_add_u32 s60, s60, {ws.FLAGS}
v_add_u32 v37, s60, v{vL0}
v_cmp_gt_u32 vcc, 24, v0
v_cndmask_b32 v37, v36, v37, vcc
s_lshl_b32 s60, s2, 5
s_add_u32 s60, s60, {ws.FA}
v_mov_b32 v38, s60
v_cmp_eq_u32 vcc, 24, v0
v_cndmask_b32 v37, v37, v38, vcc
s_waitcnt lgkmcnt(0)""")
        self.srd(WSR, 92, ws.END); self.srd(XR_, 64, XA_SZ)
        e.vm(f"buffer_store_dwordx4 v[32:35], v37, {W}, 0 offen sc1", "clr")
        self.srd(QKVR, 66, 640 * 3840); self.srd(WOR, 68, 640 * 1280)
        self.srd(WINR, 72, 640 * 3072); self.srd(WSPR, 74, 2048 * 4096); self.srd(BSPR, 76, 4096); self.srd(WOUTR, 78, 768 * 1280)
        self.srd(OUTR, 88, XA_SZ); self.srd(DBGR, 90, 256)
        if self.prof:
            e("s_memrealtime s[100:101]\ns_waitcnt lgkmcnt(0)\ns_lshl_b64 exec, s[98:99], 63\nv_mov_b32 v14, s100\ns_mov_b64 exec, -1")
        self.stamp(0)
        e(f"""s_lshr_b32 s64, s2, 1
s_and_b32 s65, s2, 1
s_mul_i32 s61, s{sW}, 3
s_mul_i32 s62, s65, 10
v_mul_u32_u24 v37, 1280, v{vC}
v_lshl_add_u32 v37, v{vG}, 4, v37
s_mul_i32 s69, s64, 20480""")
        for i in range(3):
            e(f"""s_add_u32 s63, s61, {i}
s_cmp_lt_u32 s63, 10
s_cselect_b32 s70, 0, {OOB:#x}
s_add_u32 s63, s63, s62
s_lshl_b32 s60, s63, 6
s_add_u32 s60, s60, s69
s_add_u32 s60, s60, s70
s_lshl_b32 s63, s63, 10
s_add_u32 s{66 + i}, s63, s70""")
            e.vm(f"buffer_load_dwordx4 {v(88 + 4 * i, 4)}, v37, s[{XR_}:{XR_+3}], s60 offen", "x")
        e(f"""s_and_b32 s60, s2, 7
s_lshr_b32 s61, s2, 5
s_lshl_b32 s61, s61, 3
s_add_u32 s60, s60, s61
s_cmp_lt_u32 s60, 60
s_cselect_b32 s73, 0, {OOB:#x}""")
        self.sdiv(70, 60, 3, 63)
        qb, cd = e.newlabel("qreg"), e.newlabel("cdone")
        e(f"""s_mul_i32 s61, s70, 3
s_sub_u32 s71, s60, s61
s_bfe_u32 s72, s2, 0x20003
s_lshl_b32 s72, s72, 2
s_add_u32 s72, s72, s{sW}
s_mul_i32 s74, s72, 40
v_mul_u32_u24 v39, {8 * 3840}, v{vG}
s_mul_i32 s75, s72, {T_QKV}
s_add_u32 s75, s75, {ws.PW_QKV}
s_add_u32 s75, s75, s73
s_cmp_eq_u32 s71, 2
s_cbranch_scc1 {qb}
s_mul_i32 s60, s70, 5120
s_add_u32 s75, s75, s60
s_lshl_b32 s60, s71, 11
s_add_u32 s75, s75, s60
s_mul_i32 s60, s71, 632
s_add_u32 s74, s74, s60
s_add_u32 s74, s74, 640
s_lshl_b32 s61, s71, 3""")
        for i in range(3):
            e(f"""v_add_u32 v40, {16 * i}, v{vC}
v_add_lshl_u32 v{44 + i}, v40, s74, 1
v_add_u32 v{44 + i}, v{44 + i}, v39
v_add_u32 v{47 + i}, {1024 * i}, v{vL0}
v_subrev_u32 v40, s61, v40
v_cmp_gt_u32 vcc, 40, v40
v_cndmask_b32 v{44 + i}, v36, v{44 + i}, vcc
v_cndmask_b32 v{47 + i}, v36, v{47 + i}, vcc""")
        e(f"s_branch {cd}")
        e.label(qb)
        e(f"""s_lshl_b32 s60, s70, 11
s_add_u32 s75, s75, s60
s_add_u32 s75, s75, {Q_FULL}
v_lshrrev_b32 v41, 2, v{vC}
v_mul_u32_u24 v42, 5, v41""")
        for i in range(3):
            e(f"""v_and_b32 v40, 3, v{vC}
v_add_u32 v40, {4 * i}, v40
v_cmp_le_u32 vcc, 5, v40
v_cndmask_b32 v43, 0, 15, vcc
v_add3_u32 v43, v43, v40, v42
v_add_lshl_u32 v{44 + i}, v43, s74, 1
v_add_u32 v{44 + i}, v{44 + i}, v39""")
        e(f"""v_mov_b32 v47, v{vL0}
v_add_u32 v48, 1024, v{vL0}
v_lshlrev_b32 v41, 1, v41
v_and_b32 v43, 1, v{vC}
v_add_u32 v41, v41, v43
v_lshl_add_u32 v41, v{vG}, 3, v41
s_mul_i32 s60, s70, 1536
s_sub_u32 s60, {Q_HALF - Q_FULL}, s60
v_lshl_add_u32 v49, v41, 4, s60
v_cmp_gt_u32 vcc, 10, v40
v_cndmask_b32 v46, v36, v46, vcc
v_cndmask_b32 v49, v36, v49, vcc""")
        e.label(cd)
        e(f"s_mul_i32 s76, s70, {32 * 3840}\ns_add_u32 s76, s76, s73")
        for i in range(3): self.gather(QKVR, 44 + i, 76, 3840, 64 + 8 * i, ("gq", i))
        self.sdiv(76, 2, 12, 255)
        e(f"""s_mul_i32 s60, s76, 12
s_sub_u32 s79, s2, s60
s_lshl_b32 s79, s79, 2
s_add_u32 s79, s79, s{sW}
s_lshl_b32 s79, s79, 1
s_cmp_lt_u32 s2, 240
s_cselect_b32 s83, 0, {OOB:#x}
v_mul_u32_u24 v39, {8 * 3072}, v{vG}
s_mul_i32 s86, s76, {32 * 3072}
s_add_u32 s86, s86, s83""")
        for i in range(2):
            z2, cd = e.newlabel("z2b"), e.newlabel("cdone")
            e(f"s_add_u32 s63, s79, {i}\ns_cmp_ge_u32 s63, 48\ns_cselect_b32 s60, 48, 0\ns_sub_u32 s63, s63, s60")
            self.sdiv(84, 63, 3, 47)
            e(f"""s_mul_i32 s60, s84, 3
s_sub_u32 s85, s63, s60
s_mul_i32 s{77 + i}, s84, {T_IN}
s_lshl_b32 s60, s85, 10
s_add_u32 s{77 + i}, s{77 + i}, s60
s_mul_i32 s60, s76, 3072
s_add_u32 s{77 + i}, s{77 + i}, s60
s_add_u32 s{77 + i}, s{77 + i}, {ws.PW_IN}
s_add_u32 s{77 + i}, s{77 + i}, s83
s_mul_i32 s87, s84, 20
s_add_u32 s87, s87, s76
s_mul_i32 s87, s87, 384
s_lshl_b32 s60, s85, 6
s_add_u32 s87, s87, s60
s_add_u32 s87, s87, {ws.CS_IN}
s_add_u32 s87, s87, s83
s_cmp_ge_u32 s79, 48
s_cbranch_scc1 {z2}
s_add_u32 s{77 + i}, s{77 + i}, 61440
s_add_u32 s87, s87, 192
s_mul_i32 s63, s84, 48""")
            self.paircol(38, 63, 85, 2)
            e(f"s_branch {cd}")
            e.label(z2)
            e(f"""s_lshl_b32 s60, s63, 4
s_add_u32 s60, s60, 768
v_and_b32 v38, 3, v{vC}
v_bfe_u32 v40, v{vC}, 2, 1
v_lshl_add_u32 v38, v40, 3, v38
v_lshrrev_b32 v40, 3, v{vC}
v_lshl_add_u32 v38, v40, 2, v38
v_add_lshl_u32 v38, v38, s60, 1""")
            e.label(cd)
            e(f"v_add_u32 v38, v38, v39\nv_lshl_add_u32 v{50 + i}, v{vC}, 2, s87")
            self.gather(WINR, 38, 86, 3072, 124 + 8 * i, ("gi", i))
        self.sdiv(83, 2, 5, 255)
        wout, cd = e.newlabel("wout"), e.newlabel("cdone")
        m5, h5 = magic(5, 95)
        e(f"""s_mul_i32 s60, s83, 5
s_sub_u32 s87, s2, s60
s_lshl_b32 s87, s87, 2
s_add_u32 s87, s87, s{sW}
s_lshl_b32 s87, s87, 1
s_cmp_lt_u32 s2, 220
s_cselect_b32 s79, 0, {OOB:#x}
s_cmp_ge_u32 s83, 20
s_cbranch_scc1 {wout}
s_mov_b32 s92, {T_O}
s_mov_b32 s93, {ws.PW_O}
s_mov_b32 s86, {15 * 1280}
s_mov_b32 s88, s{WOR}
s_mov_b32 s89, s{WOR + 1}
s_mov_b32 s90, {640 * 1280}
s_lshl_b32 s60, s83, 2
v_add_u32 v40, s60, v{vG}
v_mul_u32_u24 v41, {m5}, v40
v_lshrrev_b32 v41, {h5}, v41
v_mul_u32_u24 v42, 5, v41
v_sub_u32 v40, v40, v42
v_cmp_eq_u32 vcc, 4, v40
v_cndmask_b32 v53, 0, 1, vcc
v_cndmask_b32 v40, v40, 0, vcc
v_mul_u32_u24 v40, 5, v40
v_mad_u32_u24 v52, v41, 40, v40
s_branch {cd}""")
        e.label(wout)
        e(f"""s_sub_u32 s83, s83, 20
s_mov_b32 s92, {T_OUT}
s_mov_b32 s93, {ws.PW_OUT}
s_mov_b32 s86, 0
s_mov_b32 s88, s{WOUTR}
s_mov_b32 s89, s{WOUTR + 1}
s_mov_b32 s90, {768 * 1280}
s_lshl_b32 s60, s83, 5
v_lshlrev_b32 v52, 3, v{vG}
v_add_u32 v52, s60, v52
v_mov_b32 v53, 0""")
        e.label(cd)
        e(f"s_mov_b32 s91, 0x20000\nv_mul_u32_u24 v52, 1280, v52\ns_mul_i32 s60, s83, 5120\ns_add_u32 s93, s93, s60\ns_add_u32 s93, s93, s79")
        P = [0, 1, 2, 3, 4, 20, 21, 22]; Q = [23, 24, 28, 29, 33, 34, 38, 39]
        for i in range(2):
            e(f"s_add_u32 s63, s87, {i}")
            self.sdiv(94, 63, 5, 39)
            e(f"""s_mul_i32 s60, s94, 5
s_sub_u32 s95, s63, s60
s_mul_i32 s{84 + i}, s94, s92
s_add_u32 s{84 + i}, s{84 + i}, s93
s_lshl_b32 s60, s95, 10
s_add_u32 s{84 + i}, s{84 + i}, s60
s_mul_i32 s63, s94, 80""")
            self.paircol(38, 63, 95, 4)
            e("v_add_u32 v38, v38, v52")
            def extra(j):
                e(f"s_mov_b32 s61, {(Q[j] - P[j]) * 1280}\nv_mad_u32_u24 v43, v53, s61, v38\ns_add_u32 s60, s79, {j * 1280}")
                if j >= 5: e("s_add_u32 s60, s60, s86")
                return 43
            self.gather(88, None, None, None, 140 + 8 * i, ("go", i), extra)
        e.wait_vm("clr")
        e(f"""s_barrier
s_lshl_b32 s60, s{sXCC}, 4
v_mov_b32 v120, 1
v_mov_b32 v121, s60
v_cmp_eq_u32 vcc, 0, v0
v_cndmask_b32 v121, v36, v121, vcc""")
        e.vm(f"buffer_atomic_add v120, v121, s[{DBGR}:{DBGR+3}], 0 offen sc0 sc1", "tick")
        self.stamp(1)
        e.wait_vm("x")
        e(f"s_add_u32 s69, s69, {ws.X0}")
        for i in range(3):
            e(f"s_add_u32 s60, s69, s{66 + i}")
            e.vm(f"buffer_store_dwordx4 {v(88 + 4 * i, 4)}, v{vL0}, {W}, s60 offen sc1")
        e("v_mov_b32 v122, 0\nv_mov_b32 v123, 0")
        for j in range(12):
            e(f"v_dot2c_f32_bf16 v122, v{88 + j}, v116\nv_dot2c_f32_bf16 v123, v{88 + j}, v{88 + j}")
        e(f"""v_permlane16_swap_b32 v122, v123
v_add_f32 v122, v122, v123
v_mov_b32 v123, v122
v_permlane32_swap_b32 v122, v123
v_add_f32 v122, v122, v123
s_lshl_b32 s60, s65, 2
s_add_u32 s60, s60, s{sW}
s_lshl_b32 s60, s60, 7
s_lshl_b32 s61, s64, 10
s_add_u32 s60, s60, s61
s_add_u32 s60, s60, {ws.ST0}
v_lshlrev_b32 v37, 2, v{vLane}
v_cmp_gt_u32 vcc, 32, v{vLane}
v_cndmask_b32 v39, v36, v37, vcc""")
        e.vm(f"buffer_store_dword v122, v39, {W}, s60 offen sc1")
        for i in range(3):
            e.wait_vm(("gq", i))
            self.merge(64 + 8 * i, 100 + 4 * i)
            e(f"{MF} {v(160 + 4 * i, 4)}, v[116:119], {v(100 + 4 * i, 4)}, 0")
            e.vm(f"buffer_store_dwordx4 {v(100 + 4 * i, 4)}, v{47 + i}, {W}, s75 offen sc1")
        e(f"""s_mul_i32 s60, s72, 20
s_add_u32 s60, s60, s70
s_lshl_b32 s60, s60, 9
s_lshl_b32 s61, s71, 1
s_lshr_b32 s62, s71, 1
s_add_u32 s61, s61, s62
s_lshl_b32 s61, s61, 6
s_add_u32 s60, s60, s61
s_add_u32 s60, s60, {ws.CS_QKV}
s_add_u32 s60, s60, s73
v_cmp_eq_u32 vcc, 1, v{vG}
v_cndmask_b32 v160, v160, v164, vcc
v_cndmask_b32 v47, v47, v48, vcc
v_cmp_eq_u32 vcc, 2, v{vG}
v_cndmask_b32 v160, v160, v168, vcc
v_cndmask_b32 v47, v47, v49, vcc
v_cmp_gt_u32 vcc, v36, v47
v_cndmask_b32 v39, v36, v37, vcc
v_cmp_gt_u32 vcc, 48, v{vLane}
v_cndmask_b32 v39, v36, v39, vcc""")
        e.vm(f"buffer_store_dword v160, v39, {W}, s60 offen sc1")
        for i in range(2):
            e.wait_vm(("gi", i))
            self.merge(124 + 8 * i, 64 + 4 * i)
            e(f"{MF} {v(164 + 4 * i, 4)}, v[116:119], {v(64 + 4 * i, 4)}, 0")
            e.vm(f"buffer_store_dwordx4 {v(64 + 4 * i, 4)}, v{vL0}, {W}, s{77 + i} offen sc1")
        for i in range(2):
            e.wait_vm(("go", i))
            self.merge(140 + 8 * i, 72 + 4 * i)
            e.vm(f"buffer_store_dwordx4 {v(72 + 4 * i, 4)}, v{vL0}, {W}, s{84 + i} offen sc1")
        e(f"""v_cmp_eq_u32 vcc, 1, v{vG}
v_cndmask_b32 v164, v164, v168, vcc
v_cndmask_b32 v50, v50, v51, vcc
v_cmp_gt_u32 vcc, 32, v{vLane}
v_cndmask_b32 v50, v36, v50, vcc""")
        e.vm(f"buffer_store_dword v164, v50, {W}, 0 offen sc1")
        e(f"""s_mul_i32 s60, s2, {POISON_PER_WG}
s_mul_i32 s61, s{sW}, {POISON_PER_WG // 4}
s_add_u32 s60, s60, s61
s_add_u32 s60, s60, {ws.POISON}
v_cmp_gt_u32 vcc, 12, v{vLane}
v_cndmask_b32 v37, v36, v{vL0}, vcc""")
        e.vm(f"buffer_store_dwordx4 v[28:31], v{vL0}, {W}, s60 offen sc1")
        e.vm(f"buffer_store_dwordx4 v[28:31], v{vL0}, {W}, s60 offen offset:1024 sc1")
        e.vm(f"buffer_store_dwordx4 v[28:31], v37, {W}, s60 offen offset:2048 sc1")
        self.stamp(2)
        nw0, top, done = e.newlabel("nw0"), e.newlabel("reg"), e.newlabel("regd")
        e(f"s_cmp_eq_u32 s{sW}, 0\ns_cbranch_scc0 {nw0}\ns_mov_b32 s{sSpin}, 0")
        e.label(top)
        e(f"buffer_load_dword v24, v{vL0}, s[{DBGR}:{DBGR+3}], 0 offen sc1\ns_add_u32 s{sSpin}, s{sSpin}, 1\ns_waitcnt vmcnt(0)")
        e("s_mov_b32 s60, 0\ns_mov_b32 s61, 0\ns_mov_b32 s62, 0")
        for j in range(16):
            e(f"""v_readlane_b32 s63, v24, {j}
s_add_u32 s60, s60, s63
s_cmp_gt_u32 s{sXCC}, {j}
s_cselect_b32 s64, s63, 0
s_add_u32 s61, s61, s64""")
            if j == 0: e("s_mov_b32 s65, s63")
            if j < 8: e("s_xor_b32 s63, s63, s65")
            e("s_or_b32 s62, s62, s63")
        e(f"""s_and_b32 s60, s60, 255
s_cbranch_scc0 {done}
s_cmp_lt_u32 s{sSpin}, {SPIN_MAX}
s_cbranch_scc1 {top}
s_branch LEND""")
        e.label(done)
        e(f"""v_readfirstlane_b32 s63, v120
s_add_u32 s61, s61, s63
s_and_b32 s63, s63, 31
s_lshl_b32 s64, s{sXCC}, 5
s_add_u32 s63, s63, s64
s_cmp_eq_u32 s62, 0
s_cselect_b32 s61, s63, s61
v_mov_b32 v24, s61
v_mov_b32 v25, s62
v_mov_b32 v26, {L_BC}
ds_write_b64 v26, v[24:25]""")
        e.label(nw0)
        e(f"""s_waitcnt vmcnt(0) lgkmcnt(0)
s_barrier
s_lshl_b32 s63, s2, 5
s_add_u32 s63, s63, {ws.FA}
s_cmp_eq_u32 s{sW}, 0
s_cselect_b32 s63, s63, {OOB:#x}""")
        e.vmq = []
        self.flag("s63", False)
        e(f"""v_mov_b32 v26, {L_BC}
ds_read_b64 v[24:25], v26
s_waitcnt lgkmcnt(0)
v_readfirstlane_b32 s60, v24
v_readfirstlane_b32 s{sMode}, v25""")
        if self.force_slow: e(f"s_mov_b32 s{sMode}, 1\ns_mov_b32 s60, s2")
        e(f"""s_and_b32 s60, s60, 255
s_lshr_b32 s{sX}, s60, 5
s_and_b32 s{sL}, s60, 31
s_lshr_b32 s{sRB}, s{sL}, 4
s_and_b32 s{sCG}, s{sL}, 15
s_lshr_b32 s{sRQ}, s{sL}, 3
s_and_b32 s{sCT}, s{sL}, 7
s_lshl_b32 s60, s{sX}, 4
s_lshl_b32 s61, s{sRB}, 3
s_add_u32 s{sRT1}, s60, s61
s_lshl_b32 s61, s{sW}, 1
s_add_u32 s{sRT1}, s{sRT1}, s61
s_lshl_b32 s61, s{sRQ}, 2
s_add_u32 s{sRT2}, s60, s61
s_add_u32 s{sRT2}, s{sRT2}, s{sW}""")
        for r, idx, t, b in ((sTQ, sCG, T_QKV, ws.PW_QKV), (sTO, sCT, T_O, ws.PW_O), (sTI, sCG, T_IN, ws.PW_IN), (sTW, sCT, T_OUT, ws.PW_OUT)):
            e(f"s_mul_i32 s{r}, s{idx}, {t}\ns_add_u32 s{r}, s{r}, {b}\ns_add_u32 s{r}, s{r}, s{sWK}")
        e(f"""s_mul_i32 s60, s{sCT}, 10
v_add_u32 v24, s60, v{vG}
v_lshlrev_b32 v{vXa}, 8, v24
v_lshl_add_u32 v{vXa}, v{vC}, 4, v{vXa}
v_lshrrev_b32 v24, 1, v{vG}
v_add3_u32 v24, v24, s60, 8
v_lshlrev_b32 v{vXb}, 8, v24
v_lshl_add_u32 v{vXb}, v{vC}, 4, v{vXb}
v_and_b32 v24, 1, v{vG}
v_lshl_add_u32 v{vXb}, v24, 3, v{vXb}
v_lshlrev_b32 v26, 5, v0
s_mov_b32 s63, {ws.FA}
v_lshlrev_b32 v28, 2, v0
v_subrev_u32 v29, 512, v28
v_cmp_gt_u32 vcc, 128, v0
v_cndmask_b32 v29, v29, v28, vcc
s_mul_i32 s60, s{sCG}, {20 * 512}
s_add_u32 s60, s60, {ws.CS_QKV}
s_mul_i32 s61, s{sCG}, {20 * 384}
s_add_u32 s61, s61, {ws.CS_IN}
v_mov_b32 v30, s61
v_mov_b32 v31, s60
v_cndmask_b32 v30, v30, v31, vcc
v_add_u32 v29, v29, v30
v_mov_b32 v30, 384
v_mov_b32 v31, 512
v_cndmask_b32 v30, v30, v31, vcc
v_cmp_gt_u32 vcc, 224, v0
v_cndmask_b32 v29, v36, v29, vcc""")
        self.stamp(3)
        self.poll(26, "s63", "-1", False)
        e("s_barrier")
        self.stamp(4)
        for j in range(20):
            e.vm(f"buffer_load_dword v{64 + j}, v29, {W}, 0 offen sc1", "cs")
            if j < 19: e("v_add_u32 v29, v29, v30")
        for st in self.dma(sTQ, G_QKV, range(13), "B0"): st()
        e(f"s_mul_i32 s60, s{sRT2}, 20480\ns_add_u32 s60, s60, {ws.X0}")
        e.vm(f"buffer_load_dwordx4 {v(vXR, 4)}, v{vXa}, {W}, s60 offen sc1")
        e.vm(f"buffer_load_dwordx4 {v(vXR + 4, 4)}, v{vXa}, {W}, s60 offen offset:1024 sc1")
        e.vm(f"buffer_load_dwordx2 {v(vXR + 8, 2)}, v{vXb}, {W}, s60 offen sc1")
        e.wait_vm("cs")
        for st in (10, 5):
            for j in range(st): e(f"v_add_f32 v{64 + j}, v{64 + j}, v{64 + st + j}")
        e(f"v_add_f32 v64, v64, v65\nv_add_f32 v66, v66, v67\nv_add_f32 v64, v64, v68\nv_add_f32 v64, v64, v66\nv_add_u32 v28, {L_CSQ}, v28")
        e.ds("ds_write_b32 v28, v64")
        e.wait_ds()
        self.entry_vmq = list(e.vmq)

    def build(self):
        e = self.e
        e.label(NAME)
        self.phase0()
        if not self.finish(0):
            from phases import body
            body(self)
        e.label("LFIN")
        if self.prof:
            self.e.lgq = []
            e(f"""s_memrealtime s[100:101]
s_waitcnt lgkmcnt(0)
s_mov_b64 exec, 1
s_lshl_b64 exec, exec, 62
v_mov_b32 v14, s100
s_mov_b64 exec, -1
s_lshl_b32 s60, s{sX}, 5
s_add_u32 s60, s60, s{sL}
s_lshl_b32 s60, s60, 2
s_add_u32 s60, s60, s{sW}
s_lshl_b32 s60, s60, 8
s_add_u32 s60, s60, {self.ws.PROF}
v_lshlrev_b32 v24, 2, v{vLane}
buffer_store_dword v14, v24, s[{WSR}:{WSR+3}], s60 offen""")
        e.label("LEND")
        e("s_endpgm")
        e.label("LCODE_END")
        lines, nops = pad_hazards(e.L)
        head = f"""; Persistent kernel: one workgroup per CU, phases chained through flags in d_ws. Generated by dev/gen.py.
; @launch grid=(256,1,1) block=(256,1,1) lds={LDS_BYTES}
.amdgcn_target "amdgcn-amd-amdhsa--gfx950"
.text
.globl {NAME}
.p2align 8
.type {NAME},@function
"""
        tail = f"""
.fill 64, 4, 0xbf800000
.section .rodata,"a"
.p2align 6
.amdhsa_kernel {NAME}
  .amdhsa_next_free_vgpr 512
  .amdhsa_next_free_sgpr 102
  .amdhsa_accum_offset 256
  .amdhsa_group_segment_fixed_size 0
  .amdhsa_kernarg_size 88
  .amdhsa_user_sgpr_count 2
  .amdhsa_user_sgpr_kernarg_segment_ptr 1
  .amdhsa_system_sgpr_workgroup_id_x 1
.end_amdhsa_kernel
"""
        return head + "\n".join(("" if l.endswith(":") else "    ") + l for l in lines) + tail, nops

if __name__ == "__main__":
    import argparse
    ap = argparse.ArgumentParser()
    ap.add_argument("-o", default="k.s"); ap.add_argument("--stop", type=int, default=99)
    ap.add_argument("--reuse", action="store_true"); ap.add_argument("--prof", action="store_true"); ap.add_argument("--slow", action="store_true")
    ap.add_argument("--opt", action="append", default=[])
    x = ap.parse_args()
    t, nops = Gen(x.stop, x.reuse, x.prof, x.slow, {k: int(val) for k, val in (o.split("=") for o in x.opt)}).build()
    open(x.o, "w").write(t)
    print("lines", t.count("\n"), "nops", nops)
```

```python
import re

def v(i, n=1): return f"v{i}" if n == 1 else f"v[{i}:{i+n-1}]"
def a(i, n=1): return f"a{i}" if n == 1 else f"a[{i}:{i+n-1}]"
def s(i, n=1): return f"s{i}" if n == 1 else f"s[{i}:{i+n-1}]"

def magic(div, maxx):
    for sh in range(4, 24):
        mul = -(-(1 << sh) // div)
        if maxx * mul < (1 << 24) and all((x * mul) >> sh == x // div for x in range(maxx + 1)):
            return mul, sh
    raise ValueError((div, maxx))

class Emit:
    def __init__(self):
        self.L = []
        self.vmq = []
        self.lgq = []
        self.nl = 0
    def __call__(self, text):
        for line in text.strip("\n").split("\n"):
            line = line.strip()
            if line: self.L.append(line)
    def label(self, name): self.L.append(name + ":")
    def newlabel(self, base):
        self.nl += 1
        return f"L{base}_{self.nl}"
    def vm(self, text, tag="_"):
        self(text); self.vmq.append(tag); assert len(self.vmq) <= 63, "vmcnt overflow"
    def ds(self, text, tag="_"):
        self(text); self.lgq.append(tag)
    def _wait(self, q, tag, name, cap):
        opt = lambda t: isinstance(t, str) and t.startswith("?")
        if tag is None:
            self(f"s_waitcnt {name}(0)"); return []
        idx = [i for i, t in enumerate(q) if t == tag]
        if not idx: return q
        rest = q[idx[-1] + 1:]
        n = len(rest) if opt(tag) else sum(not opt(t) for t in rest)
        self(f"s_waitcnt {name}({min(n, cap)})")
        return [t for t in q if t != tag] if opt(tag) else rest
    def wait_vm(self, tag=None): self.vmq = self._wait(self.vmq, tag, "vmcnt", 63)
    def wait_ds(self, tag=None): self.lgq = self._wait(self.lgq, tag, "lgkmcnt", 15)

_REG = re.compile(r"^(-|\|)?(abs\()?([vas])(\d+|\[(\d+):(\d+)\])\)?\|?$")
def regs_of(op):
    op = op.strip()
    if op in ("vcc", "exec"): return [(op, 0)]
    if op == "m0": return [("m0", 0)]
    m = _REG.match(op)
    if not m: return []
    c = m.group(3)
    if m.group(5) is not None: return [(c, i) for i in range(int(m.group(5)), int(m.group(6)) + 1)]
    return [(c, int(m.group(4)))]

TRANS = ("v_exp_f32", "v_log_f32", "v_rcp_f32", "v_rsq_f32", "v_sqrt_f32", "v_sin_f32", "v_cos_f32")

class Ins:
    def __init__(self, text):
        self.text = text
        t = text.split(";")[0].strip()
        self.mn, _, rest = t.partition(" ")
        ops = []
        for piece in rest.split(","):
            piece = piece.strip()
            if piece: ops.append(piece.split(" ")[0])
        ops = [o for o in ops if not o.startswith(("op_sel", "quad_perm", "neg_"))]
        mn = self.mn
        R = lambda lst: [r for o in lst for r in regs_of(o)]
        self.w = []; self.r = []; self.A = []; self.C = []; self.data = []
        self.kind = "other"; self.passes = 0
        self.dpp = "_dpp" in mn or "row_" in t or "quad_perm" in t
        if mn.startswith("v_mfma"):
            self.kind = "mfma"; self.passes = 8 if "32x32" in mn else 4
            self.w = R(ops[:1]); self.A = R(ops[1:3]); self.C = R(ops[3:4]); self.r = self.A + self.C
        elif mn.startswith("v_"):
            self.kind = "valu"
            if mn.startswith("v_permlane"):
                self.w = R(ops); self.r = R(ops)
            elif mn.startswith(("v_add_co", "v_sub_co", "v_addc_co", "v_subb_co")):
                self.w = R(ops[:2]); self.r = R(ops[2:])
            else:
                self.w = R(ops[:1]); self.r = R(ops[1:])
                if mn.startswith(("v_fmac", "v_dot2c", "v_writelane")) or self.dpp: self.r += self.w
        elif mn.startswith("ds_"):
            self.kind = "ds"
            if mn.startswith(("ds_read", "ds_bpermute", "ds_permute", "ds_swizzle")):
                self.w = R(ops[:1]); self.r = R(ops[1:])
            else: self.r = R(ops)
        elif mn.startswith(("buffer_", "global_")):
            self.kind = "vmem"
            self.lds = t.endswith(" lds") or " lds " in t
            if "load" in mn and not self.lds:
                self.w = R(ops[:1]); self.r = R(ops[1:])
            else:
                self.r = R(ops)
                if "atomic" in mn and " sc0" in t: self.w = R(ops[:1])
                if "store" in mn and mn.endswith(("x3", "x4")):
                    self.data = R(ops[:1]) if mn.startswith("buffer") else R(ops[1:2])
        elif mn.startswith("s_"):
            self.kind = "salu"
            if mn == "s_nop": self.nop = int(ops[0], 0) + 1
            if ops and not mn.startswith(("s_cmp", "s_cbranch", "s_branch", "s_waitcnt", "s_nop", "s_bitcmp", "s_sleep", "s_setprio")):
                self.w = R(ops[:1])
            self.target = ops[0] if mn.startswith(("s_cbranch", "s_branch")) else None
        self.states = getattr(self, "nop", 1)

CAP = 24
def need(st, I):
    miss = 0
    def req(ev, reg, n):
        nonlocal miss
        e = st.get((ev, reg))
        if e is not None:
            nn = n(e[1]) if callable(n) else n
            miss = max(miss, nn - e[0])
    dres = lambda info: 8 if info[0] == 4 else 12
    if I.kind == "mfma":
        for r in I.r: req("vw", r, 2); req("dot", r, 3)
        for r in I.A: req("mw", r, dres)
        for r in I.C: req("mw", r, lambda info: 0 if (info[1] == tuple(I.C) and info[0] == I.passes) else (6 if info[0] == 4 else 10))
        if not I.C:
            for r in I.w: req("mw", r, dres)
    elif I.kind in ("valu", "ds", "vmem"):
        for r in I.r + I.w: req("mw", r, dres)
        for r in I.r:
            req("tw", r, 1)
            if not (I.mn.startswith("v_dot2")): req("dot", r, 3)
        for r in I.w:
            req("sd", r, 2)
            if I.kind == "valu": req("mc", r, lambda info: 3 if info == 4 else 7)
        if I.kind == "valu":
            for r in I.r:
                if I.dpp or I.mn.startswith("v_permlane"): req("vw", r, 2)
                if I.mn.startswith(("v_readlane", "v_readfirstlane")): req("vw", r, 1)
                req("sw", r, 4 if I.mn.startswith(("v_readlane", "v_writelane")) else 2)
        if I.kind == "vmem":
            for r in I.r: req("sw", r, 5)
            if getattr(I, "lds", False): req("m0", ("m0", 0), 1)
        if I.mn.startswith("v_writelane"): req("m0", ("m0", 0), 1)
    return miss

def advance(st, n):
    return {k: (e[0] + n, e[1]) for k, e in st.items() if e[0] + n < CAP}

def apply(st, I):
    st = advance(st, I.states)
    if I.kind == "mfma":
        for r in I.w: st[("mw", r)] = (0, (I.passes, tuple(I.w))); st.pop(("vw", r), None)
        for r in I.C: st[("mc", r)] = (0, I.passes)
    elif I.kind == "valu":
        for r in I.w:
            if r[0] in ("v", "a"):
                st[("vw", r)] = (0, None); st.pop(("mw", r), None); st.pop(("tw", r), None); st.pop(("dot", r), None)
                if I.mn.startswith(TRANS): st[("tw", r)] = (0, None)
                if I.mn.startswith("v_dot2"): st[("dot", r)] = (0, None)
            else: st[("sw", r)] = (0, None)
    elif I.kind == "vmem":
        for r in I.data: st[("sd", r)] = (0, None)
    elif I.kind == "salu":
        for r in I.w:
            st.pop(("sw", r), None)
            if r[0] == "m0": st[("m0", r)] = (0, None)
    return st

def merge(x, y):
    if x is None: return dict(y)
    out = dict(x)
    for k, e in y.items():
        if k not in out or e[0] < out[k][0]: out[k] = e
    return out

def pad_hazards(lines):
    items = [(l, None if (l.endswith(":") or l.startswith((".", ";"))) else Ins(l)) for l in lines]
    total = 0
    atlabel = {}
    for _ in range(6):
        out = []; st = {}; added = 0; newat = {}
        dead = False
        for l, I in items:
            if I is None:
                if l.endswith(":"):
                    inc = merge(atlabel.get(l[:-1]), newat.get(l[:-1], {}))
                    st = inc if dead else merge(st, inc)
                    dead = False
                out.append((l, I)); continue
            m = need(st, I)
            while m > 0:
                k = min(m, 16)
                N = Ins(f"s_nop {k-1}"); out.append((N.text, N)); st = apply(st, N); m -= k; added += 1
            out.append((l, I)); st = apply(st, I)
            if I.kind == "salu" and I.target:
                newat[I.target] = merge(newat.get(I.target), st)
                if I.mn == "s_branch": dead = True
            if I.mn == "s_endpgm": dead = True
        items = out; total += added
        same = newat == atlabel
        atlabel = newat
        if not added and same: break
    return [l for l, _ in items], total
```

```python
from kemit import *
from layout import *
from gen import *

W = f"s[{WSR}:{WSR+3}]"
MF = "v_mfma_f32_16x16x32_bf16"
MF32 = "v_mfma_f32_32x32x16_bf16"

def pkb(reg):
    return v(reg & ~1, 2), reg & 1

def pk(e, op, d, srcs):
    ops, lo, hi = [], [], []
    for k, r in srcs:
        if k == "p": ops.append(v(r, 2)); lo.append(0); hi.append(1)
        else:
            t, sel = pkb(r); ops.append(t); lo.append(sel); hi.append(sel)
    e(f"v_pk_{op}_f32 {v(d, 2)}, {', '.join(ops)} op_sel:[{','.join(map(str, lo))}] op_sel_hi:[{','.join(map(str, hi))}]")

def a_loads(G, sbase, tiles, nks, off):
    e = G.e
    out = []
    for ks in range(nks):
        def ld(ks=ks):
            for T in range(tiles):
                o = off(ks, T)
                e(f"s_add_u32 s{sSrc}, s{sbase}, {o & ~4095}")
                e.vm(f"buffer_load_dwordx4 {a((ks * tiles + T) * 4, 4)}, v{vL0}, {W}, s{sSrc} offen offset:{o & 4095} sc1", ("A", ks))
        out.append(ld)
    return out

def run(gen):
    for _ in gen: pass

def phi(e, items, t):
    for n, (ac, rs, rl, dst) in enumerate(items):
        u = t + 4 * (n & 1)
        pk(e, "mul", u, [("p", ac), rl])
        pk(e, "fma", u + 2, [("p", ac), rs, ("b", vC1E)])
        e(f"v_exp_f32_e64 v{u}, v{u} clamp\nv_exp_f32_e64 v{u + 1}, v{u + 1} clamp")
        e(f"v_max_f32 v{u}, v{u}, v{u + 2}\nv_max_f32 v{u + 1}, v{u + 1}, v{u + 3}")
        pk(e, "add", u, [("p", u), ("b", vC1E + 1)])
        if callable(dst): dst(u)
        else: e(f"v_cvt_pk_bf16_f32 v{dst}, v{u}, v{u + 1}")

def gelu(e, items, t):
    for i in range(0, len(items), 2):
        grp = items[i:i + 2]
        for n, (ac, rs) in enumerate(grp): pk(e, "mul", ac, [("p", ac), rs])
        for n, (ac, rs) in enumerate(grp): pk(e, "mul", t + 2 * n, [("p", ac), ("p", ac)])
        for n, (ac, rs) in enumerate(grp): pk(e, "fma", t + 2 * n, [("p", t + 2 * n), ("b", vK01 + 1), ("b", vK01)])
        for n, (ac, rs) in enumerate(grp): pk(e, "mul", t + 2 * n, [("p", t + 2 * n), ("p", ac)])
        for j in range(2 * len(grp)): e(f"v_exp_f32 v{t + j}, v{t + j}")
        for n, (ac, rs) in enumerate(grp): pk(e, "add", t + 2 * n, [("p", t + 2 * n), ("b", vC1E)])
        for j in range(2 * len(grp)): e(f"v_rcp_f32 v{t + j}, v{t + j}")
        for n, (ac, rs) in enumerate(grp): pk(e, "mul", ac, [("p", ac), ("p", t + 2 * n)])

def sentinel_retry(G, issue, regs, t):
    e = G.e
    chk, ok = e.newlabel("chk"), e.newlabel("ok")
    e(f"s_mov_b32 s{sSpin}, 0")
    e.wait_vm("sent")
    saved = list(e.vmq)
    e.label(chk)
    e(f"v_max_u32 v{t}, v{regs[0]}, v{regs[1]}")
    for i in range(2, len(regs), 2): e(f"v_max3_u32 v{t}, v{regs[i]}, v{regs[i + 1]}, v{t}")
    e(f"""v_cmp_eq_u32 vcc, -1, v{t}
s_add_u32 s{sSpin}, s{sSpin}, 1
s_cmp_eq_u64 vcc, 0
s_cbranch_scc1 {ok}
s_cmp_ge_u32 s{sSpin}, {SPIN_MAX}
s_cbranch_scc1 LEND""")
    e.vmq = []
    issue()
    e(f"s_waitcnt vmcnt(0)\ns_branch {chk}")
    e.label(ok)
    e.vmq = saved

def p1(G):
    e, ws = G.e, G.ws
    ACC, QAC, RING = 40, 80, 104
    NM, RS, RL, CSK, NMT, RST, RLT, CSQ, T0, OP, KVA = 144, 152, 160, 168, 174, 176, 178, 180, 192, 196, 200
    e.label("LP1_WAIT")
    e(f"""s_lshl_b32 s63, s{sX}, 3
s_lshl_b32 s60, s{sRB}, 2
s_add_u32 s63, s63, s60
s_add_u32 s63, s63, s{sW}
s_lshl_b32 s63, s63, 6
s_add_u32 s63, s63, {ws.F_X2}
v_lshlrev_b32 v26, 2, v{vLane}""")
    G.poll(26, "s63", "0xffff", True)
    e.label("LP1_GO")
    e.vmq = list(G.entry_vmq)
    G.stamp(5)
    e(f"s_mul_i32 s64, s{sRT1}, 20480\ns_add_u32 s64, s64, s{sLoff}\ns_add_u32 s64, s64, {ws.X0}")
    AL = a_loads(G, 64, 2, 20, lambda ks, T: T * 20480 + ks * 1024)
    D = 4
    AL[0]()
    e(f"s_lshl_b32 s62, s{sRT1}, 10\ns_add_u32 s62, s62, s{sLoff}\ns_add_u32 s62, s62, {ws.ST0}")
    e.vm(f"buffer_load_dwordx4 {v(T0, 4)}, v{vL0}, {W}, s62 offen sc1", "st")
    e.vm(f"buffer_load_dwordx4 {v(T0 + 4, 4)}, v{vL0}, {W}, s62 offen offset:1024 sc1", "st")
    for ks in range(1, D): AL[ks]()
    def s1():
        sk = e.newlabel("nocs")
        e(f"s_cmp_eq_u32 s{sLay}, 0\ns_cbranch_scc0 {sk}")
        for st in (10, 5):
            for j in range(st): e(f"v_add_f32 v{216 + j}, v{216 + j}, v{216 + st + j}")
        e(f"v_add_f32 v216, v216, v217\nv_add_f32 v218, v218, v219\nv_add_f32 v216, v216, v220\nv_lshlrev_b32 v28, 2, v0\nv_add_f32 v216, v216, v218\nv_add_u32 v28, {L_CSQ}, v28")
        e("ds_write_b32 v28, v216\ns_waitcnt lgkmcnt(0)")
        e.label(sk)
        yield
        yield from G.row_stats(T0, T0 + 4, T0 + 8)
        while not G.passed52: yield
        yield from G.each(f"""v_lshl_add_u32 v26, v{vG}, 4, s65
v_lshl_add_u32 v27, v{vC}, 2, s65
v_lshlrev_b32 v28, 2, v{vC}
v_add_u32 v28, {L_CSQ}, v28
v_lshlrev_b32 v29, 4, v{vG}
v_add_u32 v29, {L_CSQ + 320}, v29""")
        rds = []
        for T in range(2):
            rds += [f"ds_read_b128 {v(NM + 4 * T, 4)}, v26 offset:{64 * T}", f"ds_read_b128 {v(RS + 4 * T, 4)}, v26 offset:{128 + 64 * T}",
                    f"ds_read_b32 v{NMT + T}, v27 offset:{64 * T}", f"ds_read_b32 v{RST + T}, v27 offset:{128 + 64 * T}"]
        rds += [f"ds_read_b32 v{CSK + b}, v28 offset:{64 * b}" for b in range(5)]
        rds += [f"ds_read_b128 {v(CSQ + 4 * b, 4)}, v29 offset:{64 * b}" for b in range(3)]
        for r in rds:
            e.ds(r, "cst"); yield; yield
        yield from G.each(f"""v_add_u32 v26, s{sWK}, v{vL0}
v_add_u32 v26, {EXCH * 4096}, v26
s_add_u32 s68, s{sW}, 1
s_lshr_b32 s68, s68, 1
s_lshl_b32 s60, s{sW}, 2
s_lshr_b32 s69, 0x3422, s60
s_and_b32 s69, s69, 15
s_lshr_b32 s70, 0x4433, s60
s_and_b32 s70, s70, 15""")
        for i, sv in enumerate((68, 69, 70)):
            yield from G.each(f"s_add_u32 s60, s{sv}, {EXCH}\ns_lshl_b32 s60, s60, 12\nv_add_u32 v{27 + i}, s60, v{vL0}")
        yield from G.each(f"""s_lshl_b32 s60, s68, 4
v_lshl_add_u32 v39, v{vG}, 2, s60
v_cmp_le_u32 vcc, 20, v39
v_cmp_gt_u32 s[72:73], 40, v39
v_mov_b32 v36, {OOB:#x}
v_cndmask_b32 v30, 0, 1, vcc
v_mul_u32_u24 v31, 1600, v30
v_lshl_add_u32 v31, v39, 2, v31
v_mul_u32_u24 v35, 20, v30""")
        for i, sv in enumerate((69, 70)):
            yield from G.each(f"""s_lshl_b32 s60, s{sv}, 4
s_sub_u32 s60, s60, 40
v_add_u32 v32, s60, v{vC}
v_sub_u32 v32, v32, v35
v_cmp_gt_u32 vcc, 20, v32
v_mul_u32_u24 v32, 80, v32
s_and_b64 vcc, vcc, s[72:73]
v_add_u32 v32, v32, v31
v_cndmask_b32 v{33 + i}, v36, v32, vcc""")
        yield from G.each(f"""v_cmp_eq_u32 vcc, 0, v{vC}
v_add_u32 v32, 1600, v31
s_and_b64 vcc, vcc, s[72:73]
v_cndmask_b32 v35, v36, v32, vcc
s_lshl_b32 s71, s{sCG}, 4
s_mul_i32 s71, s71, {KV_REC}
s_add_u32 s71, s71, s{sKoff}
s_add_u32 s71, s71, {ws.KVP}
s_lshl_b32 s60, s{sX}, 1
s_add_u32 s60, s60, s{sRB}
s_mul_i32 s60, s60, {KV_REC}
s_add_u32 s74, s60, s71
v_lshlrev_b32 v39, 4, v0
v_cmp_gt_u32 vcc, 210, v0
v_lshrrev_b32 v38, 2, v{vC}
v_lshlrev_b32 v38, 1, v38
v_cndmask_b32 v37, v36, v39, vcc
v_add_u32 v39, {L_KVT}, v39
v_and_b32 v32, 1, v{vC}
v_add_u32 v38, v38, v32
v_lshl_add_u32 v38, v{vG}, 3, v38
v_lshlrev_b32 v38, 4, v38
v_add_u32 v38, 0x20000, v38
v_cmp_gt_u32 s[66:67], 8, v{vC}
s_mov_b32 s60, {f2u(LOG2E):#x}""")
        e.wait_ds("cst")
        yield from G.each("\n".join([f"v_mul_f32 v{RL + j}, s60, v{RS + j}" for j in range(8)] + [f"v_mul_f32 v{RLT + j}, s60, v{RST + j}" for j in range(2)]))
    frags, fill = [], {}
    for ks in range(20):
        for b in range(5):
            r, o = G.lds(place(G_QKV, ks * 5120 + 1024 * b))
            ms = [f"{MF} {v(ACC + (2 * b + T) * 4, 4)}, {a((2 * ks + T) * 4, 4)}, {{B}}, {'0' if ks == 0 else v(ACC + (2 * b + T) * 4, 4)}" for T in range(2)]
            frags.append((r, o, ("A", ks) if b == 0 else None, ms))
        if ks + D < 20: fill.setdefault(5 * ks + 1, []).append(AL[ks + D])
    G.spread(fill, G.dma(sTQ, G_QKV, range(13, 19), "Bb"), 3, 4)
    G.spread(fill, G.dma(sTQ, G_QKV, range(19, 25), "Bc"), 28, 4)
    G.spread(fill, G.dma(sTQ, G_QKV, range(25, 38), "Bq"), G.opt("bq0", 78), (99 - G.opt("bq0", 78)) / 12)
    G.passed52 = False
    def bar52():
        G.bar("Bb")(); G.passed52 = True
    G.gemm(frags, RING, 10, fill, {0: G.bar("B0"), 52: bar52, 76: G.bar("Bc")}, s1(), 3, 2)
    G.stamp(6)
    acc = lambda b, T, h: ACC + (2 * b + T) * 4 + 2 * h
    for b in range(5):
        for T in range(2):
            for h in range(2): pk(e, "fma", acc(b, T, h), [("p", NM + 4 * T + 2 * h), ("b", CSK + b), ("p", acc(b, T, h))])
    items = []
    for b in range(3):
        for T in range(2):
            for h in range(2):
                dst = OP + 4 * b + 2 * T + h
                if b == 2:
                    def dst(u, T=T, h=h, d=dst):
                        pk(e, "mul", u + 2, [("p", acc(2, T, h)), ("p", RS + 4 * T + 2 * h)])
                        e(f"v_cndmask_b32 v{u}, v{u + 2}, v{u}, s[66:67]\nv_cndmask_b32 v{u + 1}, v{u + 3}, v{u + 1}, s[66:67]")
                        e(f"v_cvt_pk_bf16_f32 v{d}, v{u}, v{u + 1}")
                items.append((acc(b, T, h), ("p", RS + 4 * T + 2 * h), ("p", RL + 4 * T + 2 * h), dst))
    e("s_barrier")
    for b in (3, 4):
        for T in range(2):
            for h in range(2): pk(e, "mul", acc(b, T, h), [("p", acc(b, T, h)), ("p", RS + 4 * T + 2 * h)])
        for T in range(2):
            for h in range(2): e(f"v_cvt_pk_bf16_f32 v{OP + 4 * b + 2 * T + h}, v{acc(b, T, h)}, v{acc(b, T, h) + 1}")
        e.ds(f"ds_write_b128 v26, {v(OP + 4 * b, 4)} offset:{4096 * b}")
    for b in range(3):
        phi(e, items[4 * b:4 * b + 4], 216)
        e.ds(f"ds_write_b128 v26, {v(OP + 4 * b, 4)} offset:{4096 * b}")
    for j in range(4): e(f"v_mov_b32 v{T0 + j}, 0x3f803f80")
    e.wait_ds()
    e("s_barrier")
    for sw in range(4):
        for i in range(3): e.ds(f"ds_read_b128 {v(40 + 12 * sw + 4 * i, 4)}, v{27 + i} offset:{1024 * sw}", ("ex", sw))
    for sw in range(4):
        e.wait_ds(("ex", sw))
        for i in range(3):
            B = v(40 + 12 * sw + 4 * (i + 1), 4) if i < 2 else v(T0, 4)
            e(f"{MF} {v(KVA + 4 * i, 4)}, {v(40 + 12 * sw, 4)}, {B}, {'0' if sw == 0 else v(KVA + 4 * i, 4)}")
    for i in range(3): e.vm(f"buffer_store_dwordx4 {v(KVA + 4 * i, 4)}, v{33 + i}, {W}, s74 offen sc1")
    e.wait_vm("Bq")
    e("s_barrier")
    G.stamp(7)
    gr = lambda j: T0 + 4 * j if j < 8 else 40 + 4 * (j - 8)
    def gat(j):
        e(f"s_add_u32 s{sSrc}, s71, {j * KV_REC}")
        e.vm(f"buffer_load_dwordx4 {v(gr(j), 4)}, v37, {W}, s{sSrc} offen sc1", "sent")
    def s2():
        yield from G.each(f"""v_lshrrev_b32 v26, 2, v{vC}
v_and_b32 v27, 3, v{vC}
v_mad_u32_u24 v28, v26, 5, v27
v_mad_u32_u24 v29, v26, 5, 4
v_cmp_eq_u32 vcc, 0, v27
v_mul_u32_u24 v30, 20, v{vG}
v_add_u32 v30, {L_KVT}, v30
v_cndmask_b32 v29, 20, v29, vcc
s_movk_i32 s60, 80
v_mad_u32_u24 v28, v28, s60, v30
v_mad_u32_u24 v29, v29, s60, v30
v_add_u32 v30, 1680, v28
v_add_u32 v31, 1680, v29
s_mul_i32 s60, s{sCG}, 5
v_add_u32 v26, s60, v{vG}
v_lshlrev_b32 v26, 8, v26
v_lshl_add_u32 v26, v{vC}, 4, v26
s_add_u32 s60, s60, 4
s_lshl_b32 s60, s60, 8
v_lshl_add_u32 v27, v{vC}, 4, s60
v_lshl_add_u32 v27, v{vG}, 2, v27
s_mul_i32 s62, s{sRT1}, 20480
s_add_u32 s62, s62, s{sLoff}
s_add_u32 s62, s62, {ws.O}
s_lshl_b32 s63, s{sX}, 1
s_add_u32 s63, s63, s{sRB}
s_lshl_b32 s63, s63, 2
s_add_u32 s63, s63, s{sW}
s_lshl_b32 s63, s63, 4
s_add_u32 s63, s63, s{sCG}
s_lshl_b32 s63, s63, 2
s_add_u32 s63, s63, s{sFoff}
s_add_u32 s63, s63, {ws.F_O}
v_mov_b32 v149, 0
v_mov_b32 v155, 0""")
    frags, fill = [], {}
    for ks in range(20):
        for b in range(3):
            r, o = G.lds(place(G_QKV, Q_FULL + ks * 2048 + 1024 * b if b < 2 else Q_HALF + ks * 512))
            if b == 2: r = "v38"
            ms = [f"{MF} {v(QAC + (2 * b + T) * 4, 4)}, {{B}}, {a((2 * ks + T) * 4, 4)}, {'0' if ks == 0 else v(QAC + (2 * b + T) * 4, 4)}" for T in range(2)]
            frags.append((r, o, None, ms))
    G.spread(fill, G.dma(sTO, G_O, range(G.opt("wo_q", 12))), 0, 2)
    G.spread(fill, [lambda j=j: gat(j) for j in range(16)], G.opt("gat0", 30), (59 - G.opt("gat0", 30)) / 15)
    G.gemm(frags, RING, 10, fill, None, s2(), 1, 2)
    G.stamp(8)
    PQ = 144
    qa = lambda T, m: QAC + (2 * (m >> 1) + T) * 4 + 2 * (m & 1)
    for T in range(2):
        for m in range(5): pk(e, "fma", qa(T, m), [("p", CSQ + 2 * m), ("b", NMT + T), ("p", qa(T, m))])
    phi(e, [(qa(T, m), ("b", RST + T), ("b", RLT + T), PQ + 6 * T + m) for T in range(2) for m in range(5)], 156)
    sentinel_retry(G, lambda: [gat(j) for j in range(16)], [gr(j) + i for j in range(16) for i in range(4)], 72)
    G.stamp(9)
    for st in (8, 4, 2, 1):
        for j in range(st):
            for i in (0, 2): pk(e, "add", gr(j) + i, [("p", gr(j) + i), ("p", gr(j + st) + i)])
    e.ds(f"ds_write_b128 v39, {v(T0, 4)}")
    e.wait_ds()
    e("s_barrier")
    KW, KF = 104, 128
    for h in range(2):
        for m in range(2):
            d = KW + 6 * (2 * h + m); ad = 28 + 2 * h + m
            e.ds(f"ds_read2_b32 {v(d, 2)}, v{ad} offset0:0 offset1:1")
            e.ds(f"ds_read2_b32 {v(d + 2, 2)}, v{ad} offset0:2 offset1:3")
            e.ds(f"ds_read_b32 v{d + 4}, v{ad} offset:16", ("kw", h, m))
    for h in range(2):
        for m in range(2):
            d = KW + 6 * (2 * h + m); f = KF + 4 * (2 * h + m)
            e(f"v_mov_b32 v{f + 3}, 0")
            e.wait_ds(("kw", h, m))
            if h == 0:
                e(f"v_cvt_pk_bf16_f32 v{f}, v{d}, v{d + 1}\nv_cvt_pk_bf16_f32 v{f + 1}, v{d + 2}, v{d + 3}\nv_cvt_pk_bf16_f32 v{f + 2}, v{d + 4}, 0")
            else:
                e(f"v_cvt_pk_bf16_f32 v{f}, 0, v{d}\nv_cvt_pk_bf16_f32 v{f + 1}, v{d + 1}, v{d + 2}\nv_cvt_pk_bf16_f32 v{f + 2}, v{d + 3}, v{d + 4}")
    ON = 192
    on = lambda T, h, m: ON + ((2 * T + h) * 2 + m) * 4
    for m in (1, 0):
        for T in range(2):
            for h in range(2): e(f"{MF} {v(on(T, h, m), 4)}, {v(KF + 4 * (2 * h + m), 4)}, {v(PQ + 6 * T + 2 * h, 4)}, 0")
    for T in range(2):
        for h in range(2): e(f"v_add_f32 v{on(T, h, 1) + 1}, v{vC1E + 1}, v{on(T, h, 1) + 1}")
    for T in range(2):
        for h in range(2): e(f"v_rcp_f32 v{on(T, h, 1) + 1}, v{on(T, h, 1) + 1}")
    for T in range(2):
        for h in range(2):
            for p in range(2): pk(e, "mul", on(T, h, 0) + 2 * p, [("p", on(T, h, 0) + 2 * p), ("b", on(T, h, 1) + 1)])
            e(f"v_mul_f32 v{on(T, h, 1)}, v{on(T, h, 1)}, v{on(T, h, 1) + 1}")
        o = 40 + 6 * T
        x0, x1, y0, y1 = on(T, 0, 0), on(T, 0, 1), on(T, 1, 0), on(T, 1, 1)
        e(f"""v_cvt_pk_bf16_f32 v{o}, v{x0}, v{x0 + 1}
v_cvt_pk_bf16_f32 v{o + 1}, v{x0 + 2}, v{x0 + 3}
v_cvt_pk_bf16_f32 v{o + 2}, v{x1}, v{y0}
v_cvt_pk_bf16_f32 v{o + 3}, v{y0 + 1}, v{y0 + 2}
v_cvt_pk_bf16_f32 v{o + 4}, v{y0 + 3}, v{y1}
s_add_u32 s60, s62, {20480 * T}""")
        e.vm(f"buffer_store_dwordx4 {v(o, 4)}, v26, {W}, s60 offen", "ost")
        e.vm(f"buffer_store_dword v{o + 4}, v27, {W}, s60 offen", "ost")
    steps = G.dma(sTO, G_O, range(G.opt("wo_q", 12), 25)) + G.dma(sTI, G_IN, range(G.opt("win_p1", 6)))
    n0 = G.opt("pre_flag", 6)
    for st in steps[:n0]: st()
    e.wait_vm("ost")
    G.flag("s63", True)
    G.stamp(10)
    for st in steps[n0:]: st()

def proj(G, second):
    e, ws = G.e, G.ws
    nks = 24 if second else 20
    ACC, RING = 40, 104
    e(f"""s_lshl_b32 s66, s{sX}, 2
s_add_u32 s66, s66, s{sRQ}
s_lshl_b32 s66, s66, 1
s_lshr_b32 s60, s{sW}, 1
s_add_u32 s66, s66, s60
s_lshl_b32 s63, s66, 6
s_add_u32 s63, s63, s{sFoff}
s_add_u32 s63, s63, {ws.F_U if second else ws.F_O}
v_lshlrev_b32 v26, 2, v{vLane}
s_mul_i32 s64, s{sRT2}, {nks * 1024}
s_add_u32 s64, s64, s{sLoff}
s_add_u32 s64, s64, {ws.U if second else ws.O}""")
    for j in range(10):
        e(f"v_lshlrev_b32 v{ACC + 2 * j}, 16, v{vXR + j}\nv_and_b32 v{ACC + 2 * j + 1}, 0xffff0000, v{vXR + j}")
    G.poll(26, "s63", "0xffff", True)
    G.stamp(20 if second else 11)
    AL = a_loads(G, 64, 1, nks, lambda ks, T: ks * 1024)
    D = 8
    for ks in range(D): AL[ks]()
    nxt = ws.LSTR if second else 0
    def s1():
        if second:
            yield from G.each(f"s_mul_i32 s67, s{sRT2}, 20480\nv_mov_b32 v27, v{vXa}\nv_mov_b32 v28, v{vXb}")
        else:
            yield from G.each(f"""s_lshr_b32 s67, s{sRT2}, 1
s_mul_i32 s67, s67, 40960
v_bfe_u32 v29, v{vC}, 2, 1
v_lshlrev_b32 v29, 10, v29
v_lshrrev_b32 v30, 3, v{vC}
v_lshl_add_u32 v29, v30, 6, v29
v_and_b32 v30, 3, v{vC}
v_lshl_add_u32 v29, v30, 4, v29
s_and_b32 s60, s{sW}, 1
s_lshl_b32 s60, s60, 7
v_add_u32 v29, s60, v29
v_and_b32 v30, 0xfc00, v{vXa}
v_and_b32 v27, 0x300, v{vXa}
v_lshl_add_u32 v27, v30, 1, v27
v_add_u32 v27, v27, v29
v_and_b32 v30, 0xfc00, v{vXb}
v_and_b32 v28, 0x308, v{vXb}
v_lshl_add_u32 v28, v30, 1, v28
v_add_u32 v28, v28, v29""")
        yield from G.each(f"""s_add_u32 s67, s67, s{sLoff}
s_add_u32 s67, s67, {(ws.X0 if second else ws.X1) + nxt}
s_lshl_b32 s68, s{sRT2}, 10
s_lshl_b32 s61, s{sCT}, 7
s_add_u32 s68, s68, s61
s_add_u32 s68, s68, s{sLoff}
s_add_u32 s68, s68, {(ws.ST0 if second else ws.ST1) + nxt}
s_lshl_b32 s63, s66, 3
s_add_u32 s63, s63, s{sCT}
s_lshl_b32 s63, s63, 1
s_and_b32 s60, s{sW}, 1
s_add_u32 s63, s63, s60
s_lshl_b32 s63, s63, 2
s_add_u32 s63, s63, {ws.F_X2 if second else ws.F_X1}""")
        if not second: yield from G.each(f"s_add_u32 s63, s63, s{sFoff}")
    frags, fill = [], {}
    for ks in range(nks):
        for b in range(5):
            r, o = G.lds(place(G_OUT if second else G_O, ks * 5120 + 1024 * b))
            frags.append((r, o, ("A", ks) if b == 0 else None, [f"{MF} {v(ACC + 4 * b, 4)}, {{B}}, {a(4 * ks, 4)}, {v(ACC + 4 * b, 4)}"]))
        if ks + D < nks: fill.setdefault(5 * ks + 1, []).append(AL[ks + D])
    if not second:
        G.spread(fill, G.dma(sTI, G_IN, range(G.opt("win_p1", 6), 13)), 66, 4)
    G.gemm(frags, RING, 12, fill, {0: lambda: e("s_barrier")}, s1(), 1, 60)
    G.stamp(21 if second else 12)
    for j in range(10): e(f"v_cvt_pk_bf16_f32 v{vXR + j}, v{ACC + 2 * j}, v{ACC + 2 * j + 1}")
    if second:
        mid = e.newlabel("notlast")
        e(f"""s_cmp_eq_u32 s{sLay}, 1
s_cbranch_scc0 {mid}
s_mul_i32 s60, s{sRT2}, 20480
s_mul_i32 s61, s{sCT}, 160
s_add_u32 s60, s60, s61
v_mul_u32_u24 v26, 1280, v{vC}
v_lshl_add_u32 v27, v{vG}, 3, v26
v_lshl_add_u32 v26, v{vG}, 4, v26
buffer_store_dwordx4 {v(vXR, 4)}, v26, s[{OUTR}:{OUTR+3}], s60 offen
buffer_store_dwordx4 {v(vXR + 4, 4)}, v26, s[{OUTR}:{OUTR+3}], s60 offen offset:64
buffer_store_dwordx2 {v(vXR + 8, 2)}, v27, s[{OUTR}:{OUTR+3}], s60 offen offset:128
s_branch LFIN""")
        e.label(mid)
    e.vm(f"buffer_store_dwordx4 {v(vXR, 4)}, v27, {W}, s67 offen", "xst")
    e.vm(f"buffer_store_dwordx4 {v(vXR + 4, 4)}, v27, {W}, s67 offen offset:{1024 if second else 2048}", "xst")
    e.vm(f"buffer_store_dwordx2 {v(vXR + 8, 2)}, v28, {W}, s67 offen", "xst")
    pk(e, "mul", 62, [("p", ACC), ("p", ACC)])
    pk(e, "mul", 64, [("p", ACC + 2), ("p", ACC + 2)])
    pk(e, "add", 60, [("p", ACC), ("p", ACC + 2)])
    pk(e, "add", 66, [("p", ACC + 4), ("p", ACC + 6)])
    for j in range(2, 10):
        pk(e, "fma", 62 + 2 * (j & 1), [("p", ACC + 2 * j), ("p", ACC + 2 * j), ("p", 62 + 2 * (j & 1))])
        if j > 3: pk(e, "add", 60 + 6 * (j & 1), [("p", 60 + 6 * (j & 1)), ("p", ACC + 2 * j)])
    pk(e, "add", 60, [("p", 60), ("p", 66)])
    pk(e, "add", 62, [("p", 62), ("p", 64)])
    e(f"""v_add_f32 v60, v60, v61
v_add_f32 v62, v62, v63
v_permlane16_swap_b32 v60, v62
v_add_f32 v60, v60, v62
v_mov_b32 v62, v60
v_permlane32_swap_b32 v60, v62
v_add_f32 v60, v60, v62
s_mov_b32 exec_hi, 0""")
    e.vm(f"buffer_store_dword v60, v26, {W}, s68 offen", "xst")
    e("s_mov_b64 exec, -1\ns_barrier")
    steps = G.dma(sTQ, G_QKV, range(8, 13)) if second else G.dma(sTI, G_IN, range(13, G.opt("win_p2", 21)))
    n0 = G.opt("pre_flag", 6)
    for st in steps[:n0]: st()
    e.wait_vm("xst")
    G.flag("s63", True)
    G.stamp(22 if second else 13)
    for st in steps[n0:]: st()

def wsp_reg(ks): return a(160 + 4 * ks, 4) if ks < 24 else v(224 + 4 * (ks - 24), 4)

def p3(G):
    e, ws = G.e, G.ws
    Z2, Z1, RING = 40, 64, 104
    NM, RS, CS2, NMT, RST, CS1, T0 = 144, 88, 160, 164, 166, 168, 192
    e(f"""s_lshl_b32 s63, s{sX}, 3
s_lshl_b32 s60, s{sRB}, 2
s_add_u32 s63, s63, s60
s_add_u32 s63, s63, s{sW}
s_lshl_b32 s63, s63, 6
s_add_u32 s63, s63, s{sFoff}
s_add_u32 s63, s63, {ws.F_X1}
v_lshlrev_b32 v26, 2, v{vLane}
s_lshl_b32 s62, s{sRT1}, 10
s_add_u32 s62, s62, s{sLoff}
s_add_u32 s62, s62, {ws.ST1}
s_mul_i32 s64, s{sRT1}, 20480
s_add_u32 s64, s64, s{sLoff}
s_add_u32 s64, s64, {ws.X1}""")
    G.poll(26, "s63", "0xffff", True)
    G.stamp(14)
    AL = a_loads(G, 64, 2, 20, lambda ks, T: (2 * ks + T) * 1024)
    D = 4
    AL[0]()
    e.vm(f"buffer_load_dwordx4 {v(T0, 4)}, v{vL0}, {W}, s62 offen sc1", "st")
    e.vm(f"buffer_load_dwordx4 {v(T0 + 4, 4)}, v{vL0}, {W}, s62 offen offset:1024 sc1", "st")
    for ks in range(1, D): AL[ks]()
    def s1():
        for m in range(4):
            yield from G.each(f"""v_add_u32 v26, {4 * m}, v{vG}
v_xor_b32 v26, v26, v{vC}
v_lshlrev_b32 v26, 4, v26
v_lshl_add_u32 v{100 + m}, v{vG}, 12, v26""")
        yield from G.each(f"""s_lshl_b32 s67, s{sX}, 2
s_add_u32 s67, s67, s{sRQ}
s_lshl_b32 s67, s67, 1
s_and_b32 s60, s{sW}, 1
s_add_u32 s68, s67, s60
s_xor_b32 s69, s68, 1
s_lshl_b32 s68, s68, 17
s_lshl_b32 s69, s69, 17
s_add_u32 s68, s68, s{sWK}
s_add_u32 s69, s69, s{sWK}
s_lshl_b32 s70, s{sW}, 15
v_and_b32 v26, 31, v{vLane}
v_lshrrev_b32 v27, 5, v{vLane}
v_xor_b32 v27, v27, v{vC}
v_lshlrev_b32 v27, 4, v27
v_lshl_add_u32 v27, v26, 8, v27
v_add_u32 v152, s70, v27""")
        yield from G.each("\n".join(f"v_xor_b32 v{152 + j}, {32 * j}, v152" for j in range(1, 8)))
        yield from G.row_stats(T0, T0 + 4, T0 + 8)
        yield from G.each(f"""v_lshrrev_b32 v27, 3, v{vC}
v_bfe_u32 v28, v{vC}, 2, 1
v_and_b32 v29, 3, v{vC}
v_lshl_add_u32 v29, v28, 3, v29
v_lshlrev_b32 v38, 4, v29
v_lshl_add_u32 v39, v27, 4, v29
v_lshl_add_u32 v32, v{vG}, 5, s65
v_lshl_add_u32 v31, v39, 2, s65
v_lshlrev_b32 v28, 2, v{vC}
v_add_u32 v28, {L_CSI}, v28
v_lshlrev_b32 v29, 4, v{vG}
v_add_u32 v29, {L_CSI + 192}, v29""")
        rds = []
        for T in range(2):
            rds += [f"ds_read_b128 {v(NM + 4 * T, 4)}, v32 offset:{16 * T}", f"ds_read_b128 {v(RS + 4 * T, 4)}, v32 offset:{128 + 16 * T}",
                    f"ds_read_b32 v{NMT + T}, v31 offset:{16 * T}", f"ds_read_b32 v{RST + T}, v31 offset:{128 + 16 * T}"]
        rds += [f"ds_read_b32 v{CS2 + b}, v28 offset:{64 * b}" for b in range(3)]
        rds += [f"ds_read_b128 {v(CS1 + 4 * b, 4)}, v29 offset:{64 * b}" for b in range(3)]
        for r in rds:
            e.ds(r, "cst"); yield; yield
        yield from G.each(f"""v_lshrrev_b32 v26, 3, v{vC}
v_lshlrev_b32 v26, 7, v26
v_lshl_add_u32 v26, v{vG}, 5, v26
v_bfe_u32 v27, v{vC}, 2, 1
v_lshl_add_u32 v33, v27, 4, v26
s_lshr_b32 s66, s{sRT1}, 1
s_lshl_b32 s66, s66, 12
s_add_u32 s66, s66, s{sSoff}
s_add_u32 s66, s66, {ws.S3}
s_lshl_b32 s71, s{sCG}, 8
s_add_u32 s71, s71, s66""")
    def wsp(sb, st, slot, tag):
        def f(m):
            e(f"s_add_u32 s{sSrc}, s{sb}, {m * 16384 + st * 256}\ns_add_u32 m0, s70, {slot * 8192 + m * 1024}")
            e.vm(f"buffer_load_dwordx4 v{100 + (m & 3)}, s[{WSPR}:{WSPR+3}], s{sSrc} offen lds", tag)
        return [lambda m=m: f(m) for m in range(8)]
    def wrd(st, slot):
        return [lambda j=j: e.ds(f"ds_read_b128 {wsp_reg(8 * st + j)}, v{152 + j} offset:{8192 * slot}", "?wrd") for j in range(8)]
    frags, fill = [], {}
    for ks in range(20):
        for b in range(3):
            r, o = G.lds(place(G_IN, ks * 3072 + 1024 * b))
            ms = [f"{MF} {v(Z2 + (2 * b + T) * 4, 4)}, {a((2 * ks + T) * 4, 4)}, {{B}}, {'0' if ks == 0 else v(Z2 + (2 * b + T) * 4, 4)}" for T in range(2)]
            frags.append((r, o, ("A", ks) if b == 0 else None, ms))
        if ks + D < 20: fill.setdefault(3 * ks + 1, []).append(AL[ks + D])
    wp2 = G.opt("win_p2", 21)
    pair = lambda fs: [G.first_layer(fs[i:i + 2]) for i in range(0, len(fs), 2)]
    late = G.dma(sTI, G_IN, range(wp2, 30), "Bz1") + pair(wsp(68, 0, 2, "?wa"))
    G.spread(fill, late[:9], 49, 1.2)
    G.gemm(frags, RING, 10, fill, {0: lambda: e("s_barrier")}, s1(), 3, 2)
    e("s_barrier")
    G.stamp(15)
    late = late[9:] + pair(wsp(68, 1, 1, "?wa"))
    z2 = lambda b, T, h: Z2 + (2 * b + T) * 4 + 2 * h
    idx = [(b, T, h) for b in range(3) for T in range(2) for h in range(2)]
    e.wait_ds("cst")
    for b, T, h in idx: pk(e, "fma", z2(b, T, h), [("p", NM + 4 * T + 2 * h), ("b", CS2 + b), ("p", z2(b, T, h))])
    its = [(z2(b, T, h), ("p", RS + 4 * T + 2 * h)) for b, T, h in idx]
    for i in range(0, 12, 2):
        for st in late[:2]: st()
        late = late[2:]
        gelu(e, its[i:i + 2], T0)
    assert not late
    S, Q, O8 = T0, T0 + 8, T0 + 16
    TH = [(T, h) for T in range(2) for h in range(2)]
    for T, h in TH: pk(e, "add", S + 4 * T + 2 * h, [("p", z2(0, T, h)), ("p", z2(1, T, h))])
    for T, h in TH: pk(e, "mul", Q + 4 * T + 2 * h, [("p", z2(0, T, h)), ("p", z2(0, T, h))])
    for T, h in TH: pk(e, "add", S + 4 * T + 2 * h, [("p", S + 4 * T + 2 * h), ("p", z2(2, T, h))])
    for b in (1, 2):
        for T, h in TH: pk(e, "fma", Q + 4 * T + 2 * h, [("p", z2(b, T, h)), ("p", z2(b, T, h)), ("p", Q + 4 * T + 2 * h)])
    for j in range(8): e(f"v_add_f32_dpp v{O8 + j}, v{S + j}, v{S + j} row_ror:8 row_mask:0xf bank_mask:0x3")
    for j in range(8): e(f"v_add_f32_dpp v{O8 + j}, v{Q + j}, v{Q + j} row_ror:8 row_mask:0xf bank_mask:0xc")
    for j in range(4): e(f"v_add_f32_dpp v{S + j}, v{O8 + j}, v{O8 + j} row_half_mirror row_mask:0xf bank_mask:0x5")
    for j in range(4): e(f"v_add_f32_dpp v{S + j}, v{O8 + 4 + j}, v{O8 + 4 + j} row_half_mirror row_mask:0xf bank_mask:0xa")
    for j in range(4): e(f"v_add_f32_dpp v{S + j}, v{S + j}, v{S + j} quad_perm:[1,0,3,2] row_mask:0xf bank_mask:0xf")
    for j in range(4): e(f"v_add_f32_dpp v{S + j}, v{S + j}, v{S + j} quad_perm:[2,3,0,1] row_mask:0xf bank_mask:0xf")
    fast, done = e.newlabel("s3f"), e.newlabel("s3d")
    e(f"""s_mov_b32 exec_lo, 0x11111111
s_mov_b32 exec_hi, 0x11111111
s_cmp_eq_u32 s{sMode}, 0
s_cbranch_scc1 {fast}
buffer_store_dwordx4 {v(S, 4)}, v33, {W}, s71 offen sc1
s_branch {done}""")
    e.label(fast)
    e.vm(f"buffer_store_dwordx4 {v(S, 4)}, v33, {W}, s71 offen")
    e.label(done)
    e("s_mov_b64 exec, -1")
    G.stamp(16)
    GS = 208
    def gat():
        for m in range(4): e.vm(f"buffer_load_dwordx4 {v(GS + 4 * m, 4)}, v{vL0}, {W}, s66 offen offset:{1024 * m} sc1", "sent")
    def s2():
        yield from G.each(f"""v_lshrrev_b32 v27, 3, v{vC}
v_mul_u32_u24 v27, 24576, v27
v_add_u32 v27, v27, v38
s_mul_i32 s60, s{sCG}, 6
v_add_u32 v26, s60, v{vG}
v_lshl_add_u32 v26, v26, 8, v27
v_lshrrev_b32 v28, 1, v{vG}
v_add3_u32 v28, v28, s60, 4
v_lshl_add_u32 v27, v28, 8, v27
v_and_b32 v28, 1, v{vG}
v_lshl_add_u32 v27, v28, 3, v27
s_mul_i32 s72, s{sRT1}, 24576
s_add_u32 s72, s72, s{sLoff}
s_add_u32 s72, s72, {ws.Z1}
v_add_u32 v29, s65, v{vL0}
v_lshrrev_b32 v30, 1, v{vG}
v_mul_u32_u24 v30, 3072, v30
v_and_b32 v31, 1, v{vG}
v_lshl_add_u32 v30, v31, 9, v30
v_lshl_add_u32 v30, v{vC}, 4, v30
s_lshr_b32 s61, s{sCG}, 1
s_lshl_b32 s61, s61, 7
s_add_u32 s61, s61, s{sRT1}
s_mul_i32 s61, s61, 3072
s_add_u32 s61, s61, s{sLoff}
s_add_u32 s61, s61, {ws.ZT}
s_and_b32 s62, s{sCG}, 1
s_mul_i32 s62, s62, 3""")
        for b in range(3):
            yield from G.each(f"""s_add_u32 s60, s62, {b}
s_lshr_b32 s{73 + b}, s60, 1
s_lshl_b32 s{73 + b}, s{73 + b}, 10
s_and_b32 s60, s60, 1
s_lshl_b32 s60, s60, 8
s_add_u32 s{73 + b}, s{73 + b}, s60
s_add_u32 s{73 + b}, s{73 + b}, s61""")
        yield from G.each(f"""s_lshl_b32 s63, s{sX}, 5
s_add_u32 s63, s63, s{sL}
s_lshl_b32 s63, s63, 7
s_add_u32 s63, s63, s{sFoff}
s_add_u32 s63, s63, {ws.F_Z}""")
        e(f"s_cmp_eq_u32 s{sW}, 0\ns_cselect_b32 s63, s63, {OOB:#x}")
        yield
    frags, fill = [], {}
    for ks in range(20):
        for b in range(3):
            r, o = G.lds(place(G_IN, 61440 + ks * 3072 + 1024 * b))
            ms = [f"{MF} {v(Z1 + (2 * b + T) * 4, 4)}, {{B}}, {a((2 * ks + T) * 4, 4)}, {'0' if ks == 0 else v(Z1 + (2 * b + T) * 4, 4)}" for T in range(2)]
            frags.append((r, o, None, ms))
    w0 = G.opt("w_c0", 4)
    fill[w0] = [G.first_layer([lambda: e.wait_vm("?wa")])]
    G.spread(fill, pair(wrd(0, 2) + wrd(1, 1)), w0, 2)
    fill.setdefault(w0 + 18, []).append(G.first_layer([lambda: e.wait_ds("?wrd")]))
    G.spread(fill, pair(wsp(68, 2, 2, "?wb") + wsp(68, 3, 1, "?wb")), w0 + 18, 3)
    fill.setdefault(G.opt("s3gat", 50), []).append(gat)
    G.gemm(frags, RING, 10, fill, {4 * wp2 - 60: G.bar("Bz1")}, s2(), 1, 22)
    z1 = lambda b, T, h: Z1 + (2 * b + T) * 4 + 2 * h
    G.first_layer([lambda: e.wait_vm("?wb")] + wrd(2, 2) + [lambda: e.wait_ds("?wrd")] + wrd(3, 1))()
    for b, T, h in idx: pk(e, "fma", z1(b, T, h), [("p", CS1 + 4 * b + 2 * h), ("b", NMT + T), ("p", z1(b, T, h))])
    e.wait_ds()
    e("s_barrier")
    G.stamp(17)
    r2 = [f for st in range(4) for f in wsp(69, st, st, "wsp")]
    its = [(z1(b, T, h), ("b", RST + T)) for b, T, h in idx]
    for i in range(0, 12, 2):
        r2[i](); r2[i + 1]()
        gelu(e, its[i:i + 2], T0)
    for T in range(2):
        o = T0 + 6 * T
        for b in range(3):
            for h in range(2): e(f"v_cvt_pk_bf16_f32 v{o + 2 * b + h}, v{z1(b, T, h)}, v{z1(b, T, h) + 1}")
        e.vm(f"buffer_store_dwordx4 {v(o, 4)}, v26, {W}, s72 offen offset:{64 * T}", "zst")
        e.vm(f"buffer_store_dwordx2 {v(o + 4, 2)}, v27, {W}, s72 offen offset:{64 * T}", "zst")
    sentinel_retry(G, gat, [GS + j for j in range(16)], 64)
    for h in range(2):
        pk(e, "add", GS + 2 * h, [("p", GS + 2 * h), ("p", GS + 4 + 2 * h)])
        pk(e, "add", GS + 8 + 2 * h, [("p", GS + 8 + 2 * h), ("p", GS + 12 + 2 * h)])
    for h in range(2): pk(e, "add", GS + 2 * h, [("p", GS + 2 * h), ("p", GS + 8 + 2 * h)])
    run(G.xreduce([GS + j for j in range(4)], GS + 4))
    for j in range(4): e(f"v_mov_b32_dpp v{GS + 4 + j}, v{GS + j} row_ror:8 row_mask:0xf bank_mask:0xf")
    run(G.moments(GS, 768))
    for j in range(4): e(f"v_mul_f32 v{GS + j}, v{GS + j}, v{GS + 4 + j}")
    e("s_mov_b64 exec, 0xff")
    e.ds(f"ds_write_b128 v29, {v(GS, 4)}")
    e.ds(f"ds_write_b128 v29, {v(GS + 4, 4)} offset:128")
    e("s_mov_b64 exec, -1")
    for T in range(2):
        e.ds(f"ds_read_b128 {v(NM + 4 * T, 4)}, v32 offset:{16 * T}")
        e.ds(f"ds_read_b128 {v(RS + 4 * T, 4)}, v32 offset:{128 + 16 * T}")
    e.wait_ds()
    for b in range(3):
        o = 64 + 4 * b
        for T, h in TH: pk(e, "fma", z2(b, T, h), [("p", z2(b, T, h)), ("p", RS + 4 * T + 2 * h), ("p", NM + 4 * T + 2 * h)])
        for T, h in TH: e(f"v_cvt_pk_bf16_f32 v{o + 2 * T + h}, v{z2(b, T, h)}, v{z2(b, T, h) + 1}")
        e.vm(f"buffer_store_dwordx4 {v(o, 4)}, v30, {W}, s{73 + b} offen sc1", "zst")
    for st in r2[12:22]: st()
    e.wait_vm("zst")
    sk = e.newlabel("nowb")
    e(f"s_cmp_eq_u32 s{sMode}, 0\ns_cbranch_scc1 {sk}\nbuffer_wbl2 sc1\ns_waitcnt vmcnt(0)")
    e.label(sk)
    e("s_barrier")
    G.flag("s63", False)
    G.stamp(18)
    for st in r2[22:]: st()

def p4(G):
    e, ws = G.e, G.ws
    ACC, WB, ZL, ZU, BI = 40, 136, 160, 172, 196
    acc = lambda fb, tb: ACC + (2 * fb + tb) * 16
    e(f"""v_lshrrev_b32 v26, 2, v{vLane}
s_lshl_b32 s60, s{sW}, 1
v_add_u32 v26, s60, v26
v_mov_b32 v27, s{sX}
v_cmp_gt_u32 vcc, 8, v{vLane}
v_cndmask_b32 v26, v27, v26, vcc
v_bfe_u32 v27, v{vLane}, 1, 1
s_lshr_b32 s60, s{sRQ}, 1
v_mov_b32 v28, s60
v_cndmask_b32 v27, v28, v27, vcc
v_lshlrev_b32 v26, 5, v26
v_lshl_add_u32 v26, v27, 4, v26
v_and_b32 v27, 1, v{vLane}
s_lshl_b32 s60, s{sCT}, 1
v_add3_u32 v26, v26, v27, s60
v_lshlrev_b32 v26, 7, v26
s_add_u32 s63, s{sFoff}, {ws.F_Z}
s_lshr_b32 s60, s{sW}, 1
s_lshl_b32 s60, s60, 8
v_xor_b32 v30, s60, v{vL0}
s_lshl_b32 s64, s{sCT}, 7
s_lshl_b32 s60, s{sW}, 5
s_add_u32 s64, s64, s60
s_mul_i32 s64, s64, 3072
s_add_u32 s64, s64, s{sLoff}
s_add_u32 s64, s64, {ws.ZT}
v_bfe_u32 v27, v{vLane}, 4, 1
v_mul_u32_u24 v31, 24576, v27
v_lshrrev_b32 v27, 5, v{vLane}
s_and_b32 s60, s{sW}, 2
v_add_u32 v27, s60, v27
v_lshl_add_u32 v31, v27, 8, v31
v_lshl_add_u32 v31, v{vC}, 4, v31
s_lshl_b32 s67, s{sX}, 2
s_add_u32 s67, s67, s{sRQ}
s_lshl_b32 s67, s67, 1
s_and_b32 s60, s{sW}, 1
s_add_u32 s67, s67, s60
s_lshl_b32 s66, s67, 6
s_mul_i32 s65, s67, 49152
s_mul_i32 s60, s{sCT}, 3072
s_add_u32 s65, s65, s60
s_add_u32 s65, s65, s{sLoff}
v_and_b32 v27, 31, v{vLane}
v_lshlrev_b32 v27, 1, v27""")
    for rel in range(4):
        e(f"s_xor_b32 s60, s{sW}, {rel}\ns_lshl_b32 s61, s60, 15\ns_add_u32 s61, s61, 16384\nv_add_u32 v{32 + rel}, s61, v{vL0}")
        if rel in (0, 3): e(f"s_lshl_b32 s61, s60, 11\nv_add_u32 v{36 + (rel & 1)}, s61, v{vL2}")
    G.poll(26, "s63", "0x3ff", True)
    G.stamp(19)
    D = G.opt("p4d", 13)
    def zl(ks):
        e(f"s_add_u32 s{sSrc}, s64, {3072 * ks}")
        for fb in range(3):
            e.vm(f"buffer_load_dwordx4 {a(((ks % D) * 3 + fb) * 4, 4)}, v30, {W}, s{sSrc} offen offset:{1024 * fb} sc1", ("Z", ks))
    for ks in range(D - 1): zl(ks)
    def rd(ks): e.ds(f"ds_read_b128 {v(WB + 4 * (ks & 3), 4)}, v{152 + (ks & 7)} offset:{8192 * (ks >> 3)}", ("W", ks))
    for ks in range(3): rd(ks)
    def late():
        e(f"s_add_u32 s60, s65, {ws.Z1}")
        for fb in range(3): e.vm(f"buffer_load_dwordx4 {v(ZL + 4 * fb, 4)}, v31, {W}, s60 offen offset:{1024 * fb} sc1", "z1")
        e.vm(f"buffer_load_ushort v{BI}, v27, s[{BSPR}:{BSPR+3}], s66 offen", "z1")
    early = G.dma(sTW, G_OUT, range(20))
    k0 = max(33 - D, 18)
    def unpack():
        e.wait_vm("z1")
        for j in range(12):
            yield from G.each(f"v_lshlrev_b32 v{ZU + 2 * j}, 16, v{ZL + j}\nv_and_b32 v{ZU + 2 * j + 1}, 0xffff0000, v{ZL + j}")
        yield from G.each(f"""v_lshlrev_b32 v{BI}, 16, v{BI}
s_lshl_b32 s63, s67, 3
s_add_u32 s63, s63, s{sCT}
s_lshl_b32 s63, s63, 1
s_lshr_b32 s60, s{sW}, 1
s_add_u32 s63, s63, s60
s_lshl_b32 s63, s63, 2
s_add_u32 s63, s63, s{sFoff}
s_add_u32 s63, s63, {ws.F_U}
s_add_u32 s65, s65, {ws.U}""")
    un = unpack()
    for ks in range(32):
        e.wait_vm(("Z", ks))
        for fb in range(3):
            z = a(((ks % D) * 3 + fb) * 4, 4)
            e(f"{MF32} {v(acc(fb, 0), 16)}, {z}, {wsp_reg(ks)}, {'0' if ks == 0 else v(acc(fb, 0), 16)}")
            if fb == 0:
                if ks + D - 1 < 32: zl(ks + D - 1)
                if ks == k0: late(); e("s_barrier")
                e.wait_ds(("W", ks))
            if ks > k0 and fb > 0 and early: early.pop(0)()
            if ks >= 29:
                for _ in range(4): next(un, None)
            e(f"{MF32} {v(acc(fb, 1), 16)}, {z}, {v(WB + 4 * (ks & 3), 4)}, {'0' if ks == 0 else v(acc(fb, 1), 16)}")
        if ks + 3 < 32: rd(ks + 3)
    run(un)
    for st in early: st()
    e("s_barrier")
    G.stamp(23)
    def red(rel, n, base, extra):
        m = (rel - 1) * 6 + n
        return (base, m * 1024) if m < 16 else (extra, (m - 16) * 1024)
    for rel in range(1, 4):
        for n in range(6):
            r, o = red(rel, n, 32 + rel, 37)
            e.ds(f"ds_write_b128 v{r}, {v(acc(n >> 1, rel & 1) + 8 * (rel >> 1) + 4 * (n & 1), 4)} offset:{o}")
            if len(e.lgq) >= 14: e.wait_ds()
    for fb in range(3):
        for j in range(4):
            d = acc(fb, 0) + 2 * j
            pk(e, "add", d, [("p", d), ("b", BI)])
    e.wait_ds()
    e("s_barrier")
    dst = lambda rel, n: acc(n >> 1, 1 if rel < 3 else 0) + (8 if rel > 1 else 0) + 4 * (n & 1)
    for n in range(6):
        for rel in range(1, 4):
            r, o = red(rel, n, 32, 36)
            e.ds(f"ds_read_b128 {v(dst(rel, n), 4)}, v{r} offset:{o}", ("R", n >> 1))
        if n == 4: e.wait_ds(("R", 0))
    for fb in range(3):
        e.wait_ds(("R", fb))
        if fb == 2: e("s_barrier")
        for rel in range(1, 4):
            for j in range(4):
                d = acc(fb, 0) + 2 * j
                pk(e, "add", d, [("p", d), ("p", dst(rel, 2 * fb + (j >> 1)) + 2 * (j & 1))])
        for j in range(4):
            d = acc(fb, 0) + 2 * j
            pk(e, "mul", d, [("p", d), ("p", ZU + 8 * fb + 2 * j)])
        for j in range(4): e(f"v_cvt_pk_bf16_f32 v{136 + 4 * fb + j}, v{acc(fb, 0) + 2 * j}, v{acc(fb, 0) + 2 * j + 1}")
        e.vm(f"buffer_store_dwordx4 {v(136 + 4 * fb, 4)}, v31, {W}, s65 offen offset:{1024 * fb}", "ust")
    steps = G.dma(sTW, G_OUT, range(20, 30)) + G.dma(sTQ, G_QKV, range(8))
    n0 = G.opt("pre_flag", 6)
    for st in steps[:n0]: st()
    e.wait_vm("ust")
    G.flag("s63", True)
    G.stamp(24)
    for st in steps[n0:]: st()

def body(G):
    e, ws = G.e, G.ws
    e("s_branch LP1_GO")
    p1(G)
    if G.finish(1): return
    proj(G, False)
    if G.finish(2): return
    p3(G)
    if G.finish(3): return
    p4(G)
    if G.finish(4): return
    proj(G, True)
    if G.finish(5): return
    e(f"""s_mov_b32 s{sLay}, 1
s_mov_b32 s{sLoff}, {ws.LSTR}
s_mov_b32 s{sFoff}, {ws.FLS}
s_mov_b32 s{sKoff}, {ws.KVP_L}
s_mov_b32 s{sSoff}, {ws.S3_L}""")
    if G.prof: e("s_lshl_b64 s[98:99], s[98:99], 30")
    e("s_branch LP1_WAIT")
```

```python
import sys, struct, math
from kemit import *
from layout import *

NAME = "interleave_layers__linear_attn_block__mixer_gmlp__prompt_kernel"
def f2u(x): return struct.unpack("<I", struct.pack("<f", x))[0]
LOG2E = 1.4426950408889634

WSR, XR_, QKVR, WOR, WINR, WSPR, BSPR, WOUTR, OUTR, DBGR = 4, 8, 12, 16, 20, 24, 28, 32, 36, 40
sW, sX, sL, sMode, sLay, sLoff, sFoff, sKoff, sSoff = range(44, 53)
sRB, sCG, sRQ, sCT, sRT1, sRT2, sXCC = range(53, 60)
sSrc, sWK, sSpin = 80, 81, 82
sTQ, sTO, sTI, sTW = 94, 95, 96, 97
vL0, vL1, vL2 = 1, 2, 3
vXR = 4
vPROF, vLane = 14, 15
vK01, vC1E = 16, 18
vXa, vXb, vG, vC = 20, 21, 22, 23
SPIN_MAX = 60000

class Gen:
    def __init__(self, stop=99, reuse=False, prof=False, force_slow=False, opts=None):
        self.opts = opts or {}
        self.e = Emit(); self.stop = stop; self.prof = prof; self.force_slow = force_slow
        self.ws = WS(reuse)

    def opt(self, k, d): return self.opts.get(k, d)

    def srd(self, d, base, nbytes):
        self.e(f"s_mov_b32 s{d}, s{base}\ns_and_b32 s{d+1}, s{base+1}, 0xffff\ns_mov_b32 s{d+2}, {nbytes:#x}\ns_mov_b32 s{d+3}, 0x20000")

    def stamp(self, i):
        if not self.prof: return
        e = self.e
        e.wait_ds()
        e(f"s_memtime s[100:101]\ns_waitcnt lgkmcnt(0)\ns_lshl_b64 exec, s[98:99], {i}\nv_mov_b32 v{vPROF}, s100\ns_mov_b64 exec, -1")

    def sdiv(self, d, x, div, maxx):
        mul, sh = magic(div, maxx)
        self.e(f"s_mul_i32 s{d}, s{x}, {mul}\ns_lshr_b32 s{d}, s{d}, {sh}")

    def lds(self, addr):
        k = addr >> 16
        return f"v{vL0 + k}", addr & 0xffff

    def poll(self, vaddr, soff, mask, local, nonzero=False):
        e = self.e
        top, done = e.newlabel("poll"), e.newlabel("pdone")
        e(f"s_mov_b64 exec, {mask}\ns_mov_b32 s{sSpin}, 0")
        e.label(top)
        e(f"""buffer_load_dword v24, v{vaddr}, s[{WSR}:{WSR+3}], {soff} offen sc1
s_add_u32 s{sSpin}, s{sSpin}, 1
s_waitcnt vmcnt(0)
v_cmp_ne_u32 vcc, 0, v24
s_cmp_eq_u64 vcc, exec
s_cbranch_scc1 {done}
s_cmp_lt_u32 s{sSpin}, {SPIN_MAX}
s_cbranch_scc1 {top}
s_branch LEND""")
        e.label(done)
        e("s_mov_b64 exec, -1")
        e.vmq = []
        if local:
            sk = e.newlabel("noinv")
            e(f"s_cmp_eq_u32 s{sMode}, 0\ns_cbranch_scc1 {sk}\nbuffer_inv sc1\ns_waitcnt vmcnt(0)")
            e.label(sk)

    def flag(self, soff, local):
        e = self.e
        e(f"v_mov_b32 v24, 1\nv_mov_b32 v25, 0\ns_mov_b64 exec, 1")
        if local:
            fast, done = e.newlabel("ffast"), e.newlabel("fdone")
            e(f"""s_cmp_eq_u32 s{sMode}, 0
s_cbranch_scc1 {fast}
buffer_wbl2 sc1
s_waitcnt vmcnt(0)
buffer_store_dword v24, v25, s[{WSR}:{WSR+3}], {soff} offen sc1
s_branch {done}""")
            e.label(fast)
            e.vm(f"buffer_store_dword v24, v25, s[{WSR}:{WSR+3}], {soff} offen", "flag")
            e.label(done)
        else:
            e.vm(f"buffer_store_dword v24, v25, s[{WSR}:{WSR+3}], {soff} offen sc1", "flag")
        e("s_mov_b64 exec, -1")

    def dma(self, stile, gmap, grans, tag="dma"):
        e = self.e
        def step(g):
            e(f"s_add_u32 s{sSrc}, s{stile}, {g * 4096}\ns_add_u32 m0, s{sWK}, {gmap[g] * 4096}")
            e.vm(f"buffer_load_dwordx4 v{vL0}, s[{WSR}:{WSR+3}], s{sSrc} offen sc1 lds", tag)
        return [lambda g=g: step(g) for g in grans]

    def gemm(self, frags, ring, R, fill=None, pre=None, stream=None, rate=2, sfirst=0):
        e = self.e
        fill = fill or {}; pre = pre or {}
        n = len(frags)
        def rd(j):
            if j in pre: pre[j]()
            e.ds(f"ds_read_b128 {v(ring + 4 * (j % R), 4)}, {frags[j][0]} offset:{frags[j][1]}", ("B", j))
        for j in range(min(R - 1, n)): rd(j)
        for j in range(n):
            if frags[j][2] is not None: e.wait_vm(frags[j][2])
            e.wait_ds(("B", j))
            for i, m in enumerate(frags[j][3]):
                e(m.format(B=v(ring + 4 * (j % R), 4)))
                if i == 0 and stream is not None and j >= sfirst:
                    for _ in range(rate): next(stream, None)
            if j + R - 1 < n: rd(j + R - 1)
            for f in fill.get(j, []): f()
        if stream is not None:
            for _ in stream: pass

    def each(self, text):
        for line in text.strip("\n").split("\n"):
            self.e(line); yield

    def first_layer(self, fs):
        def f():
            sk = self.e.newlabel("l0")
            self.e(f"s_cmp_eq_u32 s{sLay}, 0\ns_cbranch_scc0 {sk}")
            for x in fs: x()
            self.e.label(sk)
        return f

    def bar(self, tag):
        return lambda: (self.e.wait_vm(tag), self.e("s_barrier"))

    def spread(self, fill, steps, first, every):
        for i, st in enumerate(steps): fill.setdefault(first + int(i * every), []).append(st)

    def xreduce(self, regs, tmp):
        for op in ("v_permlane16_swap_b32", "v_permlane32_swap_b32"):
            yield from self.each("\n".join(f"v_mov_b32 v{tmp + i}, v{r}" for i, r in enumerate(regs)))
            yield from self.each("\n".join(f"{op} v{r}, v{tmp + i}" for i, r in enumerate(regs)))
            yield from self.each("\n".join(f"v_add_f32 v{r}, v{r}, v{tmp + i}" for i, r in enumerate(regs)))

    def moments(self, t, n):
        J = range(4)
        yield from self.each(f"s_mov_b32 s60, {f2u(-1.0 / n):#x}\ns_mov_b32 s61, {f2u(1.0 / n):#x}")
        yield from self.each("\n".join(
            [f"v_mul_f32 v{t + j}, s60, v{t + j}" for j in J] + [f"v_mul_f32 v{t + 8 + j}, v{t + j}, v{t + j}" for j in J] +
            [f"v_fma_f32 v{t + 4 + j}, v{t + 4 + j}, s61, -v{t + 8 + j}" for j in J] + [f"v_max_f32 v{t + 4 + j}, 0, v{t + 4 + j}" for j in J] +
            [f"v_add_f32 v{t + 4 + j}, {f2u(1e-5):#x}, v{t + 4 + j}" for j in J] + [f"v_rsq_f32 v{t + 4 + j}, v{t + 4 + j}" for j in J]))

    def row_stats(self, ra, rb_, t):
        e = self.e
        e.wait_vm("st")
        for j in range(4): yield from self.each(f"v_add_f32_dpp v{t + j}, v{ra + j}, v{ra + j} row_ror:8 row_mask:0xf bank_mask:0x3")
        for j in range(4): yield from self.each(f"v_add_f32_dpp v{t + j}, v{rb_ + j}, v{rb_ + j} row_ror:8 row_mask:0xf bank_mask:0xc")
        yield from self.xreduce([t + j for j in range(4)], t + 4)
        for j in range(4): yield from self.each(f"v_mov_b32_dpp v{t + 4 + j}, v{t + j} row_shl:4 row_mask:0xf bank_mask:0xf")
        yield from self.moments(t, 640)
        yield from self.each(f"""v_lshrrev_b32 v{t + 8}, 3, v{vC}
v_and_b32 v{t + 9}, 3, v{vC}
v_lshlrev_b32 v{t + 9}, 4, v{t + 9}
v_lshl_add_u32 v{t + 8}, v{t + 8}, 6, v{t + 9}
s_lshl_b32 s65, s{sW}, 8
s_add_u32 s65, s65, {L_ST}
v_add_u32 v{t + 8}, s65, v{t + 8}""")
        e("s_mov_b64 exec, 0x0f0f")
        e.ds(f"ds_write_b128 v{t + 8}, {v(t, 4)}")
        e.ds(f"ds_write_b128 v{t + 8}, {v(t + 4, 4)} offset:128", "stw")
        e("s_mov_b64 exec, -1")
        yield

    def finish(self, phase):
        if self.stop == phase:
            self.e("s_branch LFIN")
            return True
        return False

    def gather(self, srd, voff, sbase, rowb, dst, tag, extra=None):
        e = self.e
        for j in range(8):
            va = voff
            if extra: va = extra(j)
            else: e(f"s_add_u32 s60, s{sbase}, {j * rowb}")
            e.vm(f"buffer_load_ushort v{dst + j}, v{va}, s[{srd}:{srd+3}], s60 offen", tag)

    def merge(self, src, dst):
        for j in range(4): self.e(f"v_lshl_or_b32 v{dst + j}, v{src + 2 * j + 1}, 16, v{src + 2 * j}")

    def paircol(self, d, sbase, sblk, last):
        self.e(f"""s_lshr_b32 s61, s{sblk}, 1
s_lshl_b32 s61, s61, 5
s_add_u32 s60, s{sbase}, s61
s_and_b32 s61, s{sblk}, 1
s_lshl_b32 s61, s61, 2
s_add_u32 s60, s60, s61
s_cmp_eq_u32 s{sblk}, {last}
s_cselect_b32 s62, 4, 8
v_lshrrev_b32 v40, 2, v{vC}
v_and_b32 v{d}, 3, v{vC}
v_mad_u32_u24 v{d}, v40, s62, v{d}
v_add_lshl_u32 v{d}, v{d}, s60, 1""")

    def phase0(self):
        e, ws = self.e, self.ws
        W = f"s[{WSR}:{WSR+3}]"
        MF = "v_mfma_f32_16x16x32_bf16"
        e(f"""s_cmp_ge_u32 s2, 256
s_cbranch_scc1 LEND
s_load_dwordx16 s[64:79], s[0:1], 0
s_load_dwordx4 s[88:91], s[0:1], 64
s_load_dwordx2 s[92:93], s[0:1], 80
s_getpc_b64 s[60:61]
s_lshr_b32 s62, s2, 3
s_lshl_b32 s62, s62, 4
v_lshrrev_b32 v24, 6, v0
v_and_b32 v25, 3, v0
v_lshl_add_u32 v25, v24, 2, v25
v_add_lshl_u32 v25, v25, s62, 7
v_min_u32 v25, LCODE_END - {NAME} - 64, v25""")
        e.vm("global_load_dword v26, v25, s[60:61]")
        if self.prof: e("s_mov_b64 s[98:99], 1\nv_mov_b32 v14, 0")
        e(f"""s_getreg_b32 s{sXCC}, hwreg(HW_REG_XCC_ID, 0, 4)
v_and_b32 v{vLane}, 63, v0
v_lshlrev_b32 v{vL0}, 4, v{vLane}
v_readfirstlane_b32 s{sW}, v24
v_add_u32 v{vL1}, 0x10000, v{vL0}
v_add_u32 v{vL2}, 0x20000, v{vL0}
v_lshrrev_b32 v{vG}, 4, v{vLane}
v_and_b32 v{vC}, 15, v{vLane}
v_mov_b32 v{vK01}, {f2u(-2 * 0.7978845608028654 * LOG2E):#x}
v_mov_b32 v{vK01 + 1}, {f2u(-2 * 0.7978845608028654 * 0.044715 * LOG2E):#x}
v_mov_b32 v{vC1E}, 1.0
v_mov_b32 v{vC1E + 1}, {f2u(1e-6):#x}
v_mov_b32 v36, {OOB:#x}
s_mov_b32 s{sLay}, 0
s_mov_b32 s{sLoff}, 0
s_mov_b32 s{sFoff}, 0
s_mov_b32 s{sKoff}, 0
s_mov_b32 s{sSoff}, 0
s_lshl_b32 s{sWK}, s{sW}, 10""")
        for j in range(4): e(f"v_mov_b32 v{32 + j}, 0\nv_mov_b32 v{28 + j}, -1\nv_mov_b32 v{116 + j}, 0x3f803f80")
        e(f"""s_mul_i32 s60, s2, 384
s_add_u32 s60, s60, {ws.FLAGS}
v_add_u32 v37, s60, v{vL0}
v_cmp_gt_u32 vcc, 24, v0
v_cndmask_b32 v37, v36, v37, vcc
s_lshl_b32 s60, s2, 7
s_add_u32 s60, s60, {ws.FA}
v_mov_b32 v38, s60
v_cmp_eq_u32 vcc, 24, v0
v_cndmask_b32 v37, v37, v38, vcc
s_waitcnt lgkmcnt(0)""")
        self.srd(WSR, 92, ws.END); self.srd(XR_, 64, XA_SZ)
        e.vm(f"buffer_store_dwordx4 v[32:35], v37, {W}, 0 offen sc1", "clr")
        self.srd(QKVR, 66, 640 * 3840); self.srd(WOR, 68, 640 * 1280)
        self.srd(WINR, 72, 640 * 3072); self.srd(WSPR, 74, 2048 * 4096); self.srd(BSPR, 76, 4096); self.srd(WOUTR, 78, 768 * 1280)
        self.srd(OUTR, 88, XA_SZ); self.srd(DBGR, 90, 256)
        if self.prof:
            e("s_memrealtime s[100:101]\ns_waitcnt lgkmcnt(0)\ns_lshl_b64 exec, s[98:99], 63\nv_mov_b32 v14, s100\ns_mov_b64 exec, -1")
        self.stamp(0)
        e(f"""s_lshr_b32 s64, s2, 1
s_and_b32 s65, s2, 1
s_mul_i32 s61, s{sW}, 3
s_mul_i32 s62, s65, 10
v_mul_u32_u24 v37, 1280, v{vC}
v_lshl_add_u32 v37, v{vG}, 4, v37
s_mul_i32 s69, s64, 20480""")
        for i in range(3):
            e(f"""s_add_u32 s63, s61, {i}
s_cmp_lt_u32 s63, 10
s_cselect_b32 s70, 0, {OOB:#x}
s_add_u32 s63, s63, s62
s_lshl_b32 s60, s63, 6
s_add_u32 s60, s60, s69
s_add_u32 s60, s60, s70
s_lshl_b32 s63, s63, 10
s_add_u32 s{66 + i}, s63, s70""")
            e.vm(f"buffer_load_dwordx4 {v(88 + 4 * i, 4)}, v37, s[{XR_}:{XR_+3}], s60 offen", "x")
        e(f"""s_and_b32 s60, s2, 7
s_lshr_b32 s61, s2, 5
s_lshl_b32 s61, s61, 3
s_add_u32 s60, s60, s61
s_cmp_lt_u32 s60, 60
s_cselect_b32 s73, 0, {OOB:#x}""")
        self.sdiv(70, 60, 3, 63)
        qb, cd = e.newlabel("qreg"), e.newlabel("cdone")
        e(f"""s_mul_i32 s61, s70, 3
s_sub_u32 s71, s60, s61
s_bfe_u32 s72, s2, 0x20003
s_lshl_b32 s72, s72, 2
s_add_u32 s72, s72, s{sW}
s_mul_i32 s74, s72, 40
v_mul_u32_u24 v39, {8 * 3840}, v{vG}
s_mul_i32 s75, s72, {T_QKV}
s_add_u32 s75, s75, {ws.PW_QKV}
s_add_u32 s75, s75, s73
s_cmp_eq_u32 s71, 2
s_cbranch_scc1 {qb}
s_mul_i32 s60, s70, 5120
s_add_u32 s75, s75, s60
s_lshl_b32 s60, s71, 11
s_add_u32 s75, s75, s60
s_mul_i32 s60, s71, 632
s_add_u32 s74, s74, s60
s_add_u32 s74, s74, 640
s_lshl_b32 s61, s71, 3""")
        for i in range(3):
            e(f"""v_add_u32 v40, {16 * i}, v{vC}
v_add_lshl_u32 v{44 + i}, v40, s74, 1
v_add_u32 v{44 + i}, v{44 + i}, v39
v_add_u32 v{47 + i}, {1024 * i}, v{vL0}
v_subrev_u32 v40, s61, v40
v_cmp_gt_u32 vcc, 40, v40
v_cndmask_b32 v{44 + i}, v36, v{44 + i}, vcc
v_cndmask_b32 v{47 + i}, v36, v{47 + i}, vcc""")
        e(f"s_branch {cd}")
        e.label(qb)
        e(f"""s_lshl_b32 s60, s70, 11
s_add_u32 s75, s75, s60
s_add_u32 s75, s75, {Q_FULL}
v_lshrrev_b32 v41, 2, v{vC}
v_mul_u32_u24 v42, 5, v41""")
        for i in range(3):
            e(f"""v_and_b32 v40, 3, v{vC}
v_add_u32 v40, {4 * i}, v40
v_cmp_le_u32 vcc, 5, v40
v_cndmask_b32 v43, 0, 15, vcc
v_add3_u32 v43, v43, v40, v42
v_add_lshl_u32 v{44 + i}, v43, s74, 1
v_add_u32 v{44 + i}, v{44 + i}, v39""")
        e(f"""v_mov_b32 v47, v{vL0}
v_add_u32 v48, 1024, v{vL0}
v_lshlrev_b32 v41, 1, v41
v_and_b32 v43, 1, v{vC}
v_add_u32 v41, v41, v43
v_lshl_add_u32 v41, v{vG}, 3, v41
s_mul_i32 s60, s70, 1536
s_sub_u32 s60, {Q_HALF - Q_FULL}, s60
v_lshl_add_u32 v49, v41, 4, s60
v_cmp_gt_u32 vcc, 10, v40
v_cndmask_b32 v46, v36, v46, vcc
v_cndmask_b32 v49, v36, v49, vcc""")
        e.label(cd)
        e(f"s_mul_i32 s76, s70, {32 * 3840}\ns_add_u32 s76, s76, s73")
        for i in range(3):
            self.gather(QKVR, 44 + i, 76, 3840, 64 + 8 * i, ("gq", i))
            if i == 1:
                e.wait_vm("clr")
                e(f"""s_and_b32 s60, s2, 3
s_lshl_b32 s60, s60, 6
v_mov_b32 v120, 1
v_mov_b32 v121, s60
v_cmp_eq_u32 vcc, 0, v0
v_cndmask_b32 v121, v36, v121, vcc""")
                e.vm(f"buffer_atomic_add v120, v121, s[{DBGR}:{DBGR+3}], 0 offen sc1")
        self.sdiv(76, 2, 12, 255)
        e(f"""s_mul_i32 s60, s76, 12
s_sub_u32 s79, s2, s60
s_lshl_b32 s79, s79, 2
s_add_u32 s79, s79, s{sW}
s_lshl_b32 s79, s79, 1
s_cmp_lt_u32 s2, 240
s_cselect_b32 s83, 0, {OOB:#x}
v_mul_u32_u24 v39, {8 * 3072}, v{vG}
s_mul_i32 s86, s76, {32 * 3072}
s_add_u32 s86, s86, s83""")
        for i in range(2):
            z2, cd = e.newlabel("z2b"), e.newlabel("cdone")
            e(f"s_add_u32 s63, s79, {i}\ns_cmp_ge_u32 s63, 48\ns_cselect_b32 s60, 48, 0\ns_sub_u32 s63, s63, s60")
            self.sdiv(84, 63, 3, 47)
            e(f"""s_mul_i32 s60, s84, 3
s_sub_u32 s85, s63, s60
s_mul_i32 s{77 + i}, s84, {T_IN}
s_lshl_b32 s60, s85, 10
s_add_u32 s{77 + i}, s{77 + i}, s60
s_mul_i32 s60, s76, 3072
s_add_u32 s{77 + i}, s{77 + i}, s60
s_add_u32 s{77 + i}, s{77 + i}, {ws.PW_IN}
s_add_u32 s{77 + i}, s{77 + i}, s83
s_mul_i32 s87, s84, 20
s_add_u32 s87, s87, s76
s_mul_i32 s87, s87, 384
s_lshl_b32 s60, s85, 6
s_add_u32 s87, s87, s60
s_add_u32 s87, s87, {ws.CS_IN}
s_add_u32 s87, s87, s83
s_cmp_ge_u32 s79, 48
s_cbranch_scc1 {z2}
s_add_u32 s{77 + i}, s{77 + i}, 61440
s_add_u32 s87, s87, 192
s_mul_i32 s63, s84, 48""")
            self.paircol(38, 63, 85, 2)
            e(f"s_branch {cd}")
            e.label(z2)
            e(f"""s_lshl_b32 s60, s63, 4
s_add_u32 s60, s60, 768
v_and_b32 v38, 3, v{vC}
v_bfe_u32 v40, v{vC}, 2, 1
v_lshl_add_u32 v38, v40, 3, v38
v_lshrrev_b32 v40, 3, v{vC}
v_lshl_add_u32 v38, v40, 2, v38
v_add_lshl_u32 v38, v38, s60, 1""")
            e.label(cd)
            e(f"v_add_u32 v38, v38, v39\nv_lshl_add_u32 v{50 + i}, v{vC}, 2, s87")
            self.gather(WINR, 38, 86, 3072, 124 + 8 * i, ("gi", i))
        self.sdiv(83, 2, 5, 255)
        wout, cd = e.newlabel("wout"), e.newlabel("cdone")
        m5, h5 = magic(5, 95)
        e(f"""s_mul_i32 s60, s83, 5
s_sub_u32 s87, s2, s60
s_lshl_b32 s87, s87, 2
s_add_u32 s87, s87, s{sW}
s_lshl_b32 s87, s87, 1
s_cmp_lt_u32 s2, 220
s_cselect_b32 s79, 0, {OOB:#x}
s_cmp_ge_u32 s83, 20
s_cbranch_scc1 {wout}
s_mov_b32 s92, {T_O}
s_mov_b32 s93, {ws.PW_O}
s_mov_b32 s86, {15 * 1280}
s_mov_b32 s88, s{WOR}
s_mov_b32 s89, s{WOR + 1}
s_mov_b32 s90, {640 * 1280}
s_lshl_b32 s60, s83, 2
v_add_u32 v40, s60, v{vG}
v_mul_u32_u24 v41, {m5}, v40
v_lshrrev_b32 v41, {h5}, v41
v_mul_u32_u24 v42, 5, v41
v_sub_u32 v40, v40, v42
v_cmp_eq_u32 vcc, 4, v40
v_cndmask_b32 v53, 0, 1, vcc
v_cndmask_b32 v40, v40, 0, vcc
v_mul_u32_u24 v40, 5, v40
v_mad_u32_u24 v52, v41, 40, v40
s_branch {cd}""")
        e.label(wout)
        e(f"""s_sub_u32 s83, s83, 20
s_mov_b32 s92, {T_OUT}
s_mov_b32 s93, {ws.PW_OUT}
s_mov_b32 s86, 0
s_mov_b32 s88, s{WOUTR}
s_mov_b32 s89, s{WOUTR + 1}
s_mov_b32 s90, {768 * 1280}
s_lshl_b32 s60, s83, 5
v_lshlrev_b32 v52, 3, v{vG}
v_add_u32 v52, s60, v52
v_mov_b32 v53, 0""")
        e.label(cd)
        e(f"s_mov_b32 s91, 0x20000\nv_mul_u32_u24 v52, 1280, v52\ns_mul_i32 s60, s83, 5120\ns_add_u32 s93, s93, s60\ns_add_u32 s93, s93, s79")
        P = [0, 1, 2, 3, 4, 20, 21, 22]; Q = [23, 24, 28, 29, 33, 34, 38, 39]
        for i in range(2):
            e(f"s_add_u32 s63, s87, {i}")
            self.sdiv(94, 63, 5, 39)
            e(f"""s_mul_i32 s60, s94, 5
s_sub_u32 s95, s63, s60
s_mul_i32 s{84 + i}, s94, s92
s_add_u32 s{84 + i}, s{84 + i}, s93
s_lshl_b32 s60, s95, 10
s_add_u32 s{84 + i}, s{84 + i}, s60
s_mul_i32 s63, s94, 80""")
            self.paircol(38, 63, 95, 4)
            e("v_add_u32 v38, v38, v52")
            def extra(j):
                e(f"s_mov_b32 s61, {(Q[j] - P[j]) * 1280}\nv_mad_u32_u24 v43, v53, s61, v38\ns_add_u32 s60, s79, {j * 1280}")
                if j >= 5: e("s_add_u32 s60, s60, s86")
                return 43
            self.gather(88, None, None, None, 140 + 8 * i, ("go", i), extra)
        self.stamp(1)
        e.wait_vm("x")
        e(f"s_add_u32 s69, s69, {ws.X0}")
        for i in range(3):
            e(f"s_add_u32 s60, s69, s{66 + i}")
            e.vm(f"buffer_store_dwordx4 {v(88 + 4 * i, 4)}, v{vL0}, {W}, s60 offen sc1")
        e("v_mov_b32 v122, 0\nv_mov_b32 v123, 0")
        for j in range(12):
            e(f"v_dot2c_f32_bf16 v122, v{88 + j}, v116\nv_dot2c_f32_bf16 v123, v{88 + j}, v{88 + j}")
        e(f"""v_permlane16_swap_b32 v122, v123
v_add_f32 v122, v122, v123
v_mov_b32 v123, v122
v_permlane32_swap_b32 v122, v123
v_add_f32 v122, v122, v123
s_lshl_b32 s60, s65, 2
s_add_u32 s60, s60, s{sW}
s_lshl_b32 s60, s60, 7
s_lshl_b32 s61, s64, 10
s_add_u32 s60, s60, s61
s_add_u32 s60, s60, {ws.ST0}
v_lshlrev_b32 v37, 2, v{vLane}
v_cmp_gt_u32 vcc, 32, v{vLane}
v_cndmask_b32 v39, v36, v37, vcc""")
        e.vm(f"buffer_store_dword v122, v39, {W}, s60 offen sc1")
        for i in range(3):
            e.wait_vm(("gq", i))
            self.merge(64 + 8 * i, 100 + 4 * i)
            e(f"{MF} {v(160 + 4 * i, 4)}, v[116:119], {v(100 + 4 * i, 4)}, 0")
            e.vm(f"buffer_store_dwordx4 {v(100 + 4 * i, 4)}, v{47 + i}, {W}, s75 offen sc1")
        e(f"""s_mul_i32 s60, s72, 20
s_add_u32 s60, s60, s70
s_lshl_b32 s60, s60, 9
s_lshl_b32 s61, s71, 1
s_lshr_b32 s62, s71, 1
s_add_u32 s61, s61, s62
s_lshl_b32 s61, s61, 6
s_add_u32 s60, s60, s61
s_add_u32 s60, s60, {ws.CS_QKV}
s_add_u32 s60, s60, s73
v_cmp_eq_u32 vcc, 1, v{vG}
v_cndmask_b32 v160, v160, v164, vcc
v_cndmask_b32 v47, v47, v48, vcc
v_cmp_eq_u32 vcc, 2, v{vG}
v_cndmask_b32 v160, v160, v168, vcc
v_cndmask_b32 v47, v47, v49, vcc
v_cmp_gt_u32 vcc, v36, v47
v_cndmask_b32 v39, v36, v37, vcc
v_cmp_gt_u32 vcc, 48, v{vLane}
v_cndmask_b32 v39, v36, v39, vcc""")
        e.vm(f"buffer_store_dword v160, v39, {W}, s60 offen sc1")
        for i in range(2):
            e.wait_vm(("gi", i))
            self.merge(124 + 8 * i, 64 + 4 * i)
            e(f"{MF} {v(164 + 4 * i, 4)}, v[116:119], {v(64 + 4 * i, 4)}, 0")
            e.vm(f"buffer_store_dwordx4 {v(64 + 4 * i, 4)}, v{vL0}, {W}, s{77 + i} offen sc1")
        for i in range(2):
            e.wait_vm(("go", i))
            self.merge(140 + 8 * i, 72 + 4 * i)
            e.vm(f"buffer_store_dwordx4 {v(72 + 4 * i, 4)}, v{vL0}, {W}, s{84 + i} offen sc1")
        e(f"""v_cmp_eq_u32 vcc, 1, v{vG}
v_cndmask_b32 v164, v164, v168, vcc
v_cndmask_b32 v50, v50, v51, vcc
v_cmp_gt_u32 vcc, 32, v{vLane}
v_cndmask_b32 v50, v36, v50, vcc""")
        e.vm(f"buffer_store_dword v164, v50, {W}, 0 offen sc1")
        e(f"""s_mul_i32 s60, s2, {POISON_PER_WG}
s_mul_i32 s61, s{sW}, {POISON_PER_WG // 4}
s_add_u32 s60, s60, s61
s_add_u32 s60, s60, {ws.POISON}
v_cmp_gt_u32 vcc, 12, v{vLane}
v_cndmask_b32 v37, v36, v{vL0}, vcc""")
        e.vm(f"buffer_store_dwordx4 v[28:31], v{vL0}, {W}, s60 offen sc1")
        e.vm(f"buffer_store_dwordx4 v[28:31], v{vL0}, {W}, s60 offen offset:1024 sc1")
        e.vm(f"buffer_store_dwordx4 v[28:31], v37, {W}, s60 offen offset:2048 sc1")
        self.stamp(2)
        top, done = e.newlabel("reg"), e.newlabel("regd")
        e(f"v_lshlrev_b32 v26, 6, v{vLane}\ns_mov_b32 s{sSpin}, 0")
        e.label(top)
        e(f"""buffer_load_dword v24, v26, s[{DBGR}:{DBGR+3}], 0 offen sc1
s_add_u32 s{sSpin}, s{sSpin}, 1
s_waitcnt vmcnt(0)
v_readlane_b32 s60, v24, 0
v_readlane_b32 s61, v24, 1
v_readlane_b32 s62, v24, 2
v_readlane_b32 s63, v24, 3
s_add_u32 s60, s60, s61
s_add_u32 s62, s62, s63
s_add_u32 s60, s60, s62
s_and_b32 s60, s60, 255
s_cbranch_scc0 {done}
s_cmp_lt_u32 s{sSpin}, {SPIN_MAX}
s_cbranch_scc1 {top}
s_branch LEND""")
        e.label(done)
        e(f"""s_barrier
s_lshl_b32 s63, s2, 7
s_add_u32 s63, s63, {ws.FA}
s_cmp_eq_u32 s{sW}, 0
s_cselect_b32 s63, s63, {OOB:#x}
s_add_u32 s60, s{sXCC}, 1
v_mov_b32 v24, s60
v_mov_b32 v25, 0
s_mov_b64 exec, 1
buffer_store_dword v24, v25, {W}, s63 offen sc1
s_mov_b64 exec, -1
v_lshlrev_b32 v26, 7, v0
s_mov_b32 s63, {ws.FA}""")
        self.stamp(3)
        self.poll(26, "s63", "-1", False, nonzero=True)
        e(f"""s_add_u32 s60, s{sXCC}, 1
v_cmp_gt_u32 s[62:63], s60, v24
v_cmp_eq_u32 s[64:65], s60, v24
v_cmp_gt_u32 vcc, s2, v0
s_and_b64 s[64:65], s[64:65], vcc
s_or_b64 s[62:63], s[62:63], s[64:65]
s_bcnt1_i32_b64 s61, s[62:63]
v_mov_b32 v27, s61""")
        for j in range(8):
            e(f"v_cmp_eq_u32 vcc, {j + 1}, v24\ns_bcnt1_i32_b64 s61, vcc\nv_writelane_b32 v27, s61, {j + 1}")
        e(f"""s_lshl_b32 s60, s{sW}, 6
s_add_u32 s60, s60, {L_ST}
v_lshl_add_u32 v28, v{vLane}, 2, s60
s_mov_b64 exec, 0xffff
ds_write_b32 v28, v27
s_mov_b64 exec, -1
v_lshlrev_b32 v28, 2, v{vC}
v_add_u32 v28, {L_ST}, v28
s_waitcnt lgkmcnt(0)
s_barrier
ds_read2_b32 v[24:25], v28 offset0:0 offset1:16
ds_read2_b32 v[26:27], v28 offset0:32 offset1:48
s_waitcnt lgkmcnt(0)
v_add_u32 v24, v24, v25
v_add3_u32 v24, v24, v26, v27
v_cmp_ne_u32 vcc, 32, v24
v_readfirstlane_b32 s60, v24
s_and_b32 s{sMode}, vcc_lo, 0x1fe""")
        self.stamp(4)
        if self.force_slow: e(f"s_mov_b32 s{sMode}, 1\ns_mov_b32 s60, s2")
        e(f"""s_and_b32 s60, s60, 255
s_lshr_b32 s{sX}, s60, 5
s_and_b32 s{sL}, s60, 31
s_lshr_b32 s{sRB}, s{sL}, 4
s_and_b32 s{sCG}, s{sL}, 15
s_lshr_b32 s{sRQ}, s{sL}, 3
s_and_b32 s{sCT}, s{sL}, 7
s_lshl_b32 s60, s{sX}, 4
s_lshl_b32 s61, s{sRB}, 3
s_add_u32 s{sRT1}, s60, s61
s_lshl_b32 s61, s{sW}, 1
s_add_u32 s{sRT1}, s{sRT1}, s61
s_lshl_b32 s61, s{sRQ}, 2
s_add_u32 s{sRT2}, s60, s61
s_add_u32 s{sRT2}, s{sRT2}, s{sW}""")
        for r, idx, t, b in ((sTQ, sCG, T_QKV, ws.PW_QKV), (sTO, sCT, T_O, ws.PW_O), (sTI, sCG, T_IN, ws.PW_IN), (sTW, sCT, T_OUT, ws.PW_OUT)):
            e(f"s_mul_i32 s{r}, s{idx}, {t}\ns_add_u32 s{r}, s{r}, {b}\ns_add_u32 s{r}, s{r}, s{sWK}")
        e(f"""s_mul_i32 s60, s{sCT}, 10
v_add_u32 v24, s60, v{vG}
v_lshlrev_b32 v{vXa}, 8, v24
v_lshl_add_u32 v{vXa}, v{vC}, 4, v{vXa}
v_lshrrev_b32 v24, 1, v{vG}
v_add3_u32 v24, v24, s60, 8
v_lshlrev_b32 v{vXb}, 8, v24
v_lshl_add_u32 v{vXb}, v{vC}, 4, v{vXb}
v_and_b32 v24, 1, v{vG}
v_lshl_add_u32 v{vXb}, v24, 3, v{vXb}
v_lshlrev_b32 v28, 2, v0
v_subrev_u32 v29, 512, v28
v_cmp_gt_u32 vcc, 128, v0
v_cndmask_b32 v29, v29, v28, vcc
s_mul_i32 s60, s{sCG}, {20 * 512}
s_add_u32 s60, s60, {ws.CS_QKV}
s_mul_i32 s61, s{sCG}, {20 * 384}
s_add_u32 s61, s61, {ws.CS_IN}
v_mov_b32 v30, s61
v_mov_b32 v31, s60
v_cndmask_b32 v30, v30, v31, vcc
v_add_u32 v29, v29, v30
v_mov_b32 v30, 384
v_mov_b32 v31, 512
v_cndmask_b32 v30, v30, v31, vcc
v_cmp_gt_u32 vcc, 224, v0
v_cndmask_b32 v29, v36, v29, vcc""")
        for st in self.dma(sTQ, G_QKV, range(13), "B0"): st()
        for j in range(20):
            e.vm(f"buffer_load_dword v{216 + j}, v29, {W}, 0 offen sc1")
            if j < 19: e("v_add_u32 v29, v29, v30")
        e(f"s_mul_i32 s60, s{sRT2}, 20480\ns_add_u32 s60, s60, {ws.X0}")
        e.vm(f"buffer_load_dwordx4 {v(vXR, 4)}, v{vXa}, {W}, s60 offen sc1")
        e.vm(f"buffer_load_dwordx4 {v(vXR + 4, 4)}, v{vXa}, {W}, s60 offen offset:1024 sc1")
        e.vm(f"buffer_load_dwordx2 {v(vXR + 8, 2)}, v{vXb}, {W}, s60 offen sc1")
        self.entry_vmq = list(e.vmq)

    def build(self):
        e = self.e
        e.label(NAME)
        self.phase0()
        if not self.finish(0):
            from phases import body
            body(self)
        e.label("LFIN")
        if self.prof:
            self.e.lgq = []
            e(f"""s_memrealtime s[100:101]
s_waitcnt lgkmcnt(0)
s_mov_b64 exec, 1
s_lshl_b64 exec, exec, 62
v_mov_b32 v14, s100
s_mov_b64 exec, -1
s_lshl_b32 s60, s{sX}, 5
s_add_u32 s60, s60, s{sL}
s_lshl_b32 s60, s60, 2
s_add_u32 s60, s60, s{sW}
s_lshl_b32 s60, s60, 8
s_add_u32 s60, s60, {self.ws.PROF}
v_lshlrev_b32 v24, 2, v{vLane}
buffer_store_dword v14, v24, s[{WSR}:{WSR+3}], s60 offen""")
            if self.opt("dbgout", 0):
                e(f"s_cmp_eq_u32 s60, {self.ws.PROF + 256 * 4 * 100}\ns_cbranch_scc0 LEND\nv_readlane_b32 s61, v14, 0\nv_readlane_b32 s62, v14, 63\nv_readlane_b32 s63, v14, 62\ns_sub_u32 s63, s63, s62\nv_mov_b32 v25, s63")
                for n, i in enumerate((4, 6, 10, 12, 15, 18, 23, 21, 36, 42, 45, 48, 53, 51)):
                    e(f"v_readlane_b32 s63, v14, {i}\ns_sub_u32 s63, s63, s61\nv_writelane_b32 v25, s63, {n + 2}")
                e(f"s_mov_b64 exec, 0xfffe\nbuffer_store_dword v25, v24, s[{DBGR}:{DBGR+3}], 0 offen")
        e.label("LEND")
        e("s_endpgm")
        e.label("LCODE_END")
        lines, nops = pad_hazards(e.L)
        head = f"""; Persistent kernel: one workgroup per CU, phases chained through flags in d_ws. Generated by dev/gen.py.
; @launch grid=(256,1,1) block=(256,1,1) lds={LDS_BYTES}
.amdgcn_target "amdgcn-amd-amdhsa--gfx950"
.text
.globl {NAME}
.p2align 8
.type {NAME},@function
"""
        tail = f"""
.fill 64, 4, 0xbf800000
.section .rodata,"a"
.p2align 6
.amdhsa_kernel {NAME}
  .amdhsa_next_free_vgpr 512
  .amdhsa_next_free_sgpr 102
  .amdhsa_accum_offset 256
  .amdhsa_group_segment_fixed_size 0
  .amdhsa_kernarg_size 88
  .amdhsa_user_sgpr_count 2
  .amdhsa_user_sgpr_kernarg_segment_ptr 1
  .amdhsa_system_sgpr_workgroup_id_x 1
.end_amdhsa_kernel
"""
        return head + "\n".join(("" if l.endswith(":") else "    ") + l for l in lines) + tail, nops

if __name__ == "__main__":
    import argparse
    ap = argparse.ArgumentParser()
    ap.add_argument("-o", default="k.s"); ap.add_argument("--stop", type=int, default=99)
    ap.add_argument("--reuse", action="store_true"); ap.add_argument("--prof", action="store_true"); ap.add_argument("--slow", action="store_true")
    ap.add_argument("--opt", action="append", default=[])
    x = ap.parse_args()
    t, nops = Gen(x.stop, x.reuse, x.prof, x.slow, {k: int(val) for k, val in (o.split("=") for o in x.opt)}).build()
    open(x.o, "w").write(t)
    print("lines", t.count("\n"), "nops", nops)
```

```python
from kemit import *
from layout import *
from gen import *

W = f"s[{WSR}:{WSR+3}]"
MF = "v_mfma_f32_16x16x32_bf16"
MF32 = "v_mfma_f32_32x32x16_bf16"

def pkb(reg):
    return v(reg & ~1, 2), reg & 1

def pk(e, op, d, srcs):
    ops, lo, hi = [], [], []
    for k, r in srcs:
        if k == "p": ops.append(v(r, 2)); lo.append(0); hi.append(1)
        else:
            t, sel = pkb(r); ops.append(t); lo.append(sel); hi.append(sel)
    e(f"v_pk_{op}_f32 {v(d, 2)}, {', '.join(ops)} op_sel:[{','.join(map(str, lo))}] op_sel_hi:[{','.join(map(str, hi))}]")

def a_loads(G, sbase, tiles, nks, off):
    e = G.e
    out = []
    for ks in range(nks):
        def ld(ks=ks):
            for T in range(tiles):
                o = off(ks, T)
                e(f"s_add_u32 s{sSrc}, s{sbase}, {o & ~4095}")
                e.vm(f"buffer_load_dwordx4 {a((ks * tiles + T) * 4, 4)}, v{vL0}, {W}, s{sSrc} offen offset:{o & 4095} sc1", ("A", ks))
        out.append(ld)
    return out

def run(gen):
    for _ in gen: pass

def phi(e, items, t):
    for n, (ac, rs, rl, dst) in enumerate(items):
        u = t + 4 * (n & 1)
        pk(e, "mul", u, [("p", ac), rl])
        pk(e, "fma", u + 2, [("p", ac), rs, ("b", vC1E)])
        e(f"v_exp_f32_e64 v{u}, v{u} clamp\nv_exp_f32_e64 v{u + 1}, v{u + 1} clamp")
        e(f"v_max_f32 v{u}, v{u}, v{u + 2}\nv_max_f32 v{u + 1}, v{u + 1}, v{u + 3}")
        pk(e, "add", u, [("p", u), ("b", vC1E + 1)])
        if callable(dst): dst(u)
        else: e(f"v_cvt_pk_bf16_f32 v{dst}, v{u}, v{u + 1}")

def gelu(e, items, t):
    for i in range(0, len(items), 2):
        grp = items[i:i + 2]
        for n, (ac, rs) in enumerate(grp): pk(e, "mul", ac, [("p", ac), rs])
        for n, (ac, rs) in enumerate(grp): pk(e, "mul", t + 2 * n, [("p", ac), ("p", ac)])
        for n, (ac, rs) in enumerate(grp): pk(e, "fma", t + 2 * n, [("p", t + 2 * n), ("b", vK01 + 1), ("b", vK01)])
        for n, (ac, rs) in enumerate(grp): pk(e, "mul", t + 2 * n, [("p", t + 2 * n), ("p", ac)])
        for j in range(2 * len(grp)): e(f"v_exp_f32 v{t + j}, v{t + j}")
        for n, (ac, rs) in enumerate(grp): pk(e, "add", t + 2 * n, [("p", t + 2 * n), ("b", vC1E)])
        for j in range(2 * len(grp)): e(f"v_rcp_f32 v{t + j}, v{t + j}")
        for n, (ac, rs) in enumerate(grp): pk(e, "mul", ac, [("p", ac), ("p", t + 2 * n)])

def sentinel_retry(G, issue, regs, t):
    e = G.e
    chk, ok = e.newlabel("chk"), e.newlabel("ok")
    e(f"s_mov_b32 s{sSpin}, 0")
    e.wait_vm("sent")
    saved = list(e.vmq)
    e.label(chk)
    e(f"v_max_u32 v{t}, v{regs[0]}, v{regs[1]}")
    for i in range(2, len(regs), 2): e(f"v_max3_u32 v{t}, v{regs[i]}, v{regs[i + 1]}, v{t}")
    e(f"""v_cmp_eq_u32 vcc, -1, v{t}
s_add_u32 s{sSpin}, s{sSpin}, 1
s_cmp_eq_u64 vcc, 0
s_cbranch_scc1 {ok}
s_cmp_ge_u32 s{sSpin}, {SPIN_MAX}
s_cbranch_scc1 LEND""")
    e.vmq = []
    issue()
    e(f"s_waitcnt vmcnt(0)\ns_branch {chk}")
    e.label(ok)
    e.vmq = saved

def p1(G):
    e, ws = G.e, G.ws
    ACC, QAC, RING = 40, 80, 104
    NM, RS, RL, CSK, NMT, RST, RLT, CSQ, T0, OP, KVA = 144, 152, 160, 168, 174, 176, 178, 180, 192, 196, 200
    e.label("LP1_WAIT")
    e(f"""s_lshl_b32 s63, s{sX}, 3
s_lshl_b32 s60, s{sRB}, 2
s_add_u32 s63, s63, s60
s_add_u32 s63, s63, s{sW}
s_lshl_b32 s63, s63, 6
s_add_u32 s63, s63, {ws.F_X2}
v_lshlrev_b32 v26, 2, v{vLane}""")
    G.poll(26, "s63", "0xffff", True, val=sBase)
    e.label("LP1_GO")
    e.vmq = list(G.entry_vmq)
    G.stamp(5)
    e(f"s_mul_i32 s64, s{sRT1}, 20480\ns_add_u32 s64, s64, s{sLoff}\ns_add_u32 s64, s64, {ws.X0}")
    AL = a_loads(G, 64, 2, 20, lambda ks, T: T * 20480 + ks * 1024)
    D = 4
    AL[0]()
    e(f"s_lshl_b32 s62, s{sRT1}, 10\ns_add_u32 s62, s62, s{sLoff}\ns_add_u32 s62, s62, {ws.ST0}")
    e.vm(f"buffer_load_dwordx4 {v(T0, 4)}, v{vL0}, {W}, s62 offen sc1", "st")
    e.vm(f"buffer_load_dwordx4 {v(T0 + 4, 4)}, v{vL0}, {W}, s62 offen offset:1024 sc1", "st")
    for ks in range(1, D): AL[ks]()
    def s1():
        yield from G.row_stats(T0, T0 + 4, T0 + 8)
        yield from G.each(f"""v_add_u32 v26, s{sWK}, v{vL0}
v_add_u32 v26, {EXCH * 4096}, v26
s_add_u32 s68, s{sW}, 1
s_lshr_b32 s68, s68, 1
s_lshl_b32 s60, s{sW}, 2
s_lshr_b32 s69, 0x3422, s60
s_and_b32 s69, s69, 15
s_lshr_b32 s70, 0x4433, s60
s_and_b32 s70, s70, 15""")
        for i, sv in enumerate((68, 69, 70)):
            yield from G.each(f"s_add_u32 s60, s{sv}, {EXCH}\ns_lshl_b32 s60, s60, 12\nv_add_u32 v{27 + i}, s60, v{vL0}")
        yield from G.each(f"""s_lshl_b32 s60, s68, 4
v_lshl_add_u32 v39, v{vG}, 2, s60
v_cmp_le_u32 vcc, 20, v39
v_cmp_gt_u32 s[72:73], 40, v39
v_mov_b32 v36, {OOB:#x}
v_cndmask_b32 v30, 0, 1, vcc
v_mul_u32_u24 v31, 1600, v30
v_lshl_add_u32 v31, v39, 2, v31
v_mul_u32_u24 v35, 20, v30""")
        for i, sv in enumerate((69, 70)):
            yield from G.each(f"""s_lshl_b32 s60, s{sv}, 4
s_sub_u32 s60, s60, 40
v_add_u32 v32, s60, v{vC}
v_sub_u32 v32, v32, v35
v_cmp_gt_u32 vcc, 20, v32
v_mul_u32_u24 v32, 80, v32
s_and_b64 vcc, vcc, s[72:73]
v_add_u32 v32, v32, v31
v_cndmask_b32 v{33 + i}, v36, v32, vcc""")
        yield from G.each(f"""v_cmp_eq_u32 vcc, 0, v{vC}
v_add_u32 v32, 1600, v31
s_and_b64 vcc, vcc, s[72:73]
v_cndmask_b32 v35, v36, v32, vcc
s_lshl_b32 s71, s{sCG}, 4
s_mul_i32 s71, s71, {KV_REC}
s_add_u32 s71, s71, s{sKoff}
s_add_u32 s71, s71, {ws.KVP}
s_lshl_b32 s60, s{sX}, 1
s_add_u32 s60, s60, s{sRB}
s_mul_i32 s60, s60, {KV_REC}
s_add_u32 s74, s60, s71
v_lshlrev_b32 v39, 4, v0
v_cmp_gt_u32 vcc, 210, v0
v_lshrrev_b32 v38, 2, v{vC}
v_lshlrev_b32 v38, 1, v38
v_cndmask_b32 v37, v36, v39, vcc
v_add_u32 v39, {L_KVT}, v39
v_and_b32 v32, 1, v{vC}
v_add_u32 v38, v38, v32
v_lshl_add_u32 v38, v{vG}, 3, v38
v_lshlrev_b32 v38, 4, v38
v_add_u32 v38, 0x20000, v38
v_cmp_gt_u32 s[66:67], 8, v{vC}
s_mov_b32 s60, {f2u(LOG2E):#x}""")
        while not G.passed: yield
        yield from G.each(f"""v_lshl_add_u32 v208, v{vG}, 4, s65
v_lshl_add_u32 v209, v{vC}, 2, s65
v_lshlrev_b32 v210, 2, v{vC}
v_add_u32 v210, {L_CSQ}, v210
v_lshlrev_b32 v211, 4, v{vG}
v_add_u32 v211, {L_CSQ + 320}, v211""")
        rds = []
        for T in range(2):
            rds += [f"ds_read_b128 {v(NM + 4 * T, 4)}, v208 offset:{64 * T}", f"ds_read_b128 {v(RS + 4 * T, 4)}, v208 offset:{128 + 64 * T}",
                    f"ds_read_b32 v{NMT + T}, v209 offset:{64 * T}", f"ds_read_b32 v{RST + T}, v209 offset:{128 + 64 * T}"]
        rds += [f"ds_read_b32 v{CSK + b}, v210 offset:{64 * b}" for b in range(5)]
        rds += [f"ds_read_b128 {v(CSQ + 4 * b, 4)}, v211 offset:{64 * b}" for b in range(3)]
        for r in rds:
            e.ds(r, "cst"); yield; yield; yield
        e.wait_ds("cst")
        yield from G.each("\n".join([f"v_mul_f32 v{RL + j}, s60, v{RS + j}" for j in range(8)] + [f"v_mul_f32 v{RLT + j}, s60, v{RST + j}" for j in range(2)]))
    frags, fill = [], {}
    for ks in range(20):
        for b in range(5):
            r, o = G.lds(place(G_QKV, ks * 5120 + 1024 * b))
            ms = [f"{MF} {v(ACC + (2 * b + T) * 4, 4)}, {a((2 * ks + T) * 4, 4)}, {{B}}, {'0' if ks == 0 else v(ACC + (2 * b + T) * 4, 4)}" for T in range(2)]
            frags.append((r, o, ("A", ks) if b == 0 else None, ms))
        if ks + D < 20: fill.setdefault(5 * ks + 1, []).append(AL[ks + D])
    G.spread(fill, G.dma(sTQ, G_QKV, range(13, 19), "Bb"), 3, 4)
    G.spread(fill, G.dma(sTQ, G_QKV, range(19, 25), "Bc"), 28, 4)
    G.spread(fill, G.dma(sTQ, G_QKV, range(25, 38), "Bq"), G.opt("bq0", 78), (99 - G.opt("bq0", 78)) / 12)
    def csl(j):
        e.vm(f"buffer_load_dword v{216 + j}, v236, {W}, 0 offen sc1", "?cs")
        e("v_add_u32 v236, v236, v237")
    G.spread(fill, [G.first_layer([lambda j=j: csl(j) for j in range(i, i + 4)]) for i in range(0, 20, 4)], 30, 5)
    def cssum():
        e.wait_vm("?cs")
        for st in (10, 5):
            for j in range(st): e(f"v_add_f32 v{216 + j}, v{216 + j}, v{216 + st + j}")
        e(f"v_add_f32 v216, v216, v217\nv_add_f32 v218, v218, v219\nv_add_f32 v216, v216, v220\nv_lshlrev_b32 v217, 2, v0\nv_add_f32 v216, v216, v218\nv_add_u32 v217, {L_CSQ}, v217")
        e("ds_write_b32 v217, v216\ns_waitcnt lgkmcnt(0)")
    def xrl():
        e(f"s_mul_i32 s{sSrc}, s{sRT2}, 20480\ns_add_u32 s{sSrc}, s{sSrc}, {ws.X0}")
        e.vm(f"buffer_load_dwordx4 {v(vXR, 4)}, v{vXa}, {W}, s{sSrc} offen sc1", "?xr")
        e.vm(f"buffer_load_dwordx4 {v(vXR + 4, 4)}, v{vXa}, {W}, s{sSrc} offen offset:1024 sc1", "?xr")
        e.vm(f"buffer_load_dwordx2 {v(vXR + 8, 2)}, v{vXb}, {W}, s{sSrc} offen sc1", "?xr")
    fill.setdefault(77, []).append(G.first_layer([xrl]))
    G.passed = False
    def bar76():
        G.first_layer([cssum])(); G.bar("Bc")(); G.passed = True
    G.gemm(frags, RING, 10, fill, {0: G.bar("B0"), 52: G.bar("Bb"), 76: bar76}, s1(), 3, 2)
    G.stamp(6)
    acc = lambda b, T, h: ACC + (2 * b + T) * 4 + 2 * h
    for b in range(5):
        for T in range(2):
            for h in range(2): pk(e, "fma", acc(b, T, h), [("p", NM + 4 * T + 2 * h), ("b", CSK + b), ("p", acc(b, T, h))])
    items = []
    for b in range(3):
        for T in range(2):
            for h in range(2):
                dst = OP + 4 * b + 2 * T + h
                if b == 2:
                    def dst(u, T=T, h=h, d=dst):
                        pk(e, "mul", u + 2, [("p", acc(2, T, h)), ("p", RS + 4 * T + 2 * h)])
                        e(f"v_cndmask_b32 v{u}, v{u + 2}, v{u}, s[66:67]\nv_cndmask_b32 v{u + 1}, v{u + 3}, v{u + 1}, s[66:67]")
                        e(f"v_cvt_pk_bf16_f32 v{d}, v{u}, v{u + 1}")
                items.append((acc(b, T, h), ("p", RS + 4 * T + 2 * h), ("p", RL + 4 * T + 2 * h), dst))
    e("s_barrier")
    for b in (3, 4):
        for T in range(2):
            for h in range(2): pk(e, "mul", acc(b, T, h), [("p", acc(b, T, h)), ("p", RS + 4 * T + 2 * h)])
        for T in range(2):
            for h in range(2): e(f"v_cvt_pk_bf16_f32 v{OP + 4 * b + 2 * T + h}, v{acc(b, T, h)}, v{acc(b, T, h) + 1}")
        e.ds(f"ds_write_b128 v26, {v(OP + 4 * b, 4)} offset:{4096 * b}")
    for b in range(3):
        phi(e, items[4 * b:4 * b + 4], 216)
        e.ds(f"ds_write_b128 v26, {v(OP + 4 * b, 4)} offset:{4096 * b}")
    for j in range(4): e(f"v_mov_b32 v{T0 + j}, 0x3f803f80")
    e.wait_ds()
    e("s_barrier")
    for sw in range(4):
        for i in range(3): e.ds(f"ds_read_b128 {v(40 + 12 * sw + 4 * i, 4)}, v{27 + i} offset:{1024 * sw}", ("ex", sw))
    for sw in range(4):
        e.wait_ds(("ex", sw))
        for i in range(3):
            B = v(40 + 12 * sw + 4 * (i + 1), 4) if i < 2 else v(T0, 4)
            e(f"{MF} {v(KVA + 4 * i, 4)}, {v(40 + 12 * sw, 4)}, {B}, {'0' if sw == 0 else v(KVA + 4 * i, 4)}")
    for i in range(3): e.vm(f"buffer_store_dwordx4 {v(KVA + 4 * i, 4)}, v{33 + i}, {W}, s74 offen sc1")
    e.wait_vm("Bq")
    e("s_barrier")
    G.stamp(7)
    gr = lambda j: T0 + 4 * j if j < 8 else 40 + 4 * (j - 8)
    def gat(j):
        e(f"s_add_u32 s{sSrc}, s71, {j * KV_REC}")
        e.vm(f"buffer_load_dwordx4 {v(gr(j), 4)}, v37, {W}, s{sSrc} offen sc1", "sent")
    def s2():
        yield from G.each(f"""v_lshrrev_b32 v26, 2, v{vC}
v_and_b32 v27, 3, v{vC}
v_mad_u32_u24 v28, v26, 5, v27
v_mad_u32_u24 v29, v26, 5, 4
v_cmp_eq_u32 vcc, 0, v27
v_mul_u32_u24 v30, 20, v{vG}
v_add_u32 v30, {L_KVT}, v30
v_cndmask_b32 v29, 20, v29, vcc
s_movk_i32 s60, 80
v_mad_u32_u24 v28, v28, s60, v30
v_mad_u32_u24 v29, v29, s60, v30
v_add_u32 v30, 1680, v28
v_add_u32 v31, 1680, v29
s_mul_i32 s60, s{sCG}, 5
v_add_u32 v26, s60, v{vG}
v_lshlrev_b32 v26, 8, v26
v_lshl_add_u32 v26, v{vC}, 4, v26
s_add_u32 s60, s60, 4
s_lshl_b32 s60, s60, 8
v_lshl_add_u32 v27, v{vC}, 4, s60
v_lshl_add_u32 v27, v{vG}, 2, v27
s_mul_i32 s62, s{sRT1}, 20480
s_add_u32 s62, s62, s{sLoff}
s_add_u32 s62, s62, {ws.O}
s_lshl_b32 s63, s{sX}, 1
s_add_u32 s63, s63, s{sRB}
s_lshl_b32 s63, s63, 2
s_add_u32 s63, s63, s{sW}
s_lshl_b32 s63, s63, 4
s_add_u32 s63, s63, s{sCG}
s_lshl_b32 s63, s63, 2
s_add_u32 s63, s63, {ws.F_O}
v_mov_b32 v149, 0
v_mov_b32 v155, 0""")
    frags, fill = [], {}
    for ks in range(20):
        for b in range(3):
            r, o = G.lds(place(G_QKV, Q_FULL + ks * 2048 + 1024 * b if b < 2 else Q_HALF + ks * 512))
            if b == 2: r = "v38"
            ms = [f"{MF} {v(QAC + (2 * b + T) * 4, 4)}, {{B}}, {a((2 * ks + T) * 4, 4)}, {'0' if ks == 0 else v(QAC + (2 * b + T) * 4, 4)}" for T in range(2)]
            frags.append((r, o, None, ms))
    G.spread(fill, G.dma(sTO, G_O, range(G.opt("wo_q", 12))), 0, 2)
    G.spread(fill, [lambda j=j: gat(j) for j in range(16)], G.opt("gat0", 30), (59 - G.opt("gat0", 30)) / 15)
    def touch_o():
        for T in range(2):
            e(f"s_add_u32 s{sSrc}, s62, {20480 * T}")
            e.vm(f"buffer_load_dword v73, v26, {W}, s{sSrc} offen sc1")
            e.vm(f"buffer_load_dword v73, v27, {W}, s{sSrc} offen sc1")
    if G.opt("touch", 1): fill.setdefault(28, []).append(touch_o)
    G.gemm(frags, RING, 10, fill, None, s2(), 2, 2)
    G.stamp(8)
    PQ = 144
    qa = lambda T, m: QAC + (2 * (m >> 1) + T) * 4 + 2 * (m & 1)
    for T in range(2):
        for m in range(5): pk(e, "fma", qa(T, m), [("p", CSQ + 2 * m), ("b", NMT + T), ("p", qa(T, m))])
    phi(e, [(qa(T, m), ("b", RST + T), ("b", RLT + T), PQ + 6 * T + m) for T in range(2) for m in range(5)], 156)
    sentinel_retry(G, lambda: [gat(j) for j in range(16)], [gr(j) + i for j in range(16) for i in range(4)], 72)
    G.stamp(9)
    for st in (8, 4, 2, 1):
        for j in range(st):
            for i in (0, 2): pk(e, "add", gr(j) + i, [("p", gr(j) + i), ("p", gr(j + st) + i)])
    e.ds(f"ds_write_b128 v39, {v(T0, 4)}")
    e.wait_ds()
    e("s_barrier")
    KW, KF = 104, 128
    for h in range(2):
        for m in range(2):
            d = KW + 6 * (2 * h + m); ad = 28 + 2 * h + m
            e.ds(f"ds_read2_b32 {v(d, 2)}, v{ad} offset0:0 offset1:1")
            e.ds(f"ds_read2_b32 {v(d + 2, 2)}, v{ad} offset0:2 offset1:3")
            e.ds(f"ds_read_b32 v{d + 4}, v{ad} offset:16", ("kw", h, m))
    for h in range(2):
        for m in range(2):
            d = KW + 6 * (2 * h + m); f = KF + 4 * (2 * h + m)
            e(f"v_mov_b32 v{f + 3}, 0")
            e.wait_ds(("kw", h, m))
            if h == 0:
                e(f"v_cvt_pk_bf16_f32 v{f}, v{d}, v{d + 1}\nv_cvt_pk_bf16_f32 v{f + 1}, v{d + 2}, v{d + 3}\nv_cvt_pk_bf16_f32 v{f + 2}, v{d + 4}, 0")
            else:
                e(f"v_cvt_pk_bf16_f32 v{f}, 0, v{d}\nv_cvt_pk_bf16_f32 v{f + 1}, v{d + 1}, v{d + 2}\nv_cvt_pk_bf16_f32 v{f + 2}, v{d + 3}, v{d + 4}")
    ON = 192
    on = lambda T, h, m: ON + ((2 * T + h) * 2 + m) * 4
    for m in (1, 0):
        for T in range(2):
            for h in range(2): e(f"{MF} {v(on(T, h, m), 4)}, {v(KF + 4 * (2 * h + m), 4)}, {v(PQ + 6 * T + 2 * h, 4)}, 0")
    for T in range(2):
        for h in range(2): e(f"v_add_f32 v{on(T, h, 1) + 1}, v{vC1E + 1}, v{on(T, h, 1) + 1}")
    for T in range(2):
        for h in range(2): e(f"v_rcp_f32 v{on(T, h, 1) + 1}, v{on(T, h, 1) + 1}")
    for T in range(2):
        for h in range(2):
            for p in range(2): pk(e, "mul", on(T, h, 0) + 2 * p, [("p", on(T, h, 0) + 2 * p), ("b", on(T, h, 1) + 1)])
            e(f"v_mul_f32 v{on(T, h, 1)}, v{on(T, h, 1)}, v{on(T, h, 1) + 1}")
        o = 40 + 6 * T
        x0, x1, y0, y1 = on(T, 0, 0), on(T, 0, 1), on(T, 1, 0), on(T, 1, 1)
        e(f"""v_cvt_pk_bf16_f32 v{o}, v{x0}, v{x0 + 1}
v_cvt_pk_bf16_f32 v{o + 1}, v{x0 + 2}, v{x0 + 3}
v_cvt_pk_bf16_f32 v{o + 2}, v{x1}, v{y0}
v_cvt_pk_bf16_f32 v{o + 3}, v{y0 + 1}, v{y0 + 2}
v_cvt_pk_bf16_f32 v{o + 4}, v{y0 + 3}, v{y1}
s_add_u32 s60, s62, {20480 * T}""")
        e.vm(f"buffer_store_dwordx4 {v(o, 4)}, v26, {W}, s60 offen", "ost")
        e.vm(f"buffer_store_dword v{o + 4}, v27, {W}, s60 offen", "ost")
    steps = G.dma(sTO, G_O, range(G.opt("wo_q", 12), 25)) + G.dma(sTI, G_IN, range(G.opt("win_p1", 6)))
    n0 = G.opt("pre_flag", 6)
    for st in steps[:n0]: st()
    e.wait_vm("ost")
    G.flag("s63", True)
    G.stamp(10)
    for st in steps[n0:]: st()

def proj(G, second):
    e, ws = G.e, G.ws
    nks = 24 if second else 20
    ACC, RING = 40, 104
    e(f"""s_lshl_b32 s66, s{sX}, 2
s_add_u32 s66, s66, s{sRQ}
s_lshl_b32 s66, s66, 1
s_lshr_b32 s60, s{sW}, 1
s_add_u32 s66, s66, s60
s_lshl_b32 s63, s66, 6
s_add_u32 s63, s63, {ws.F_U if second else ws.F_O}
v_lshlrev_b32 v26, 2, v{vLane}
s_mul_i32 s64, s{sRT2}, {nks * 1024}
s_add_u32 s64, s64, s{sLoff}
s_add_u32 s64, s64, {ws.U if second else ws.O}""")
    for j in range(10):
        e(f"v_lshlrev_b32 v{ACC + 2 * j}, 16, v{vXR + j}\nv_and_b32 v{ACC + 2 * j + 1}, 0xffff0000, v{vXR + j}")
    G.poll(26, "s63", "0xffff", True)
    G.stamp(20 if second else 11)
    AL = a_loads(G, 64, 1, nks, lambda ks, T: ks * 1024)
    D = 8
    for ks in range(D): AL[ks]()
    nxt = ws.LSTR if second else 0
    def s1():
        if second:
            yield from G.each(f"s_mul_i32 s67, s{sRT2}, 20480\nv_mov_b32 v27, v{vXa}\nv_mov_b32 v28, v{vXb}")
        else:
            yield from G.each(f"""s_lshr_b32 s67, s{sRT2}, 1
s_mul_i32 s67, s67, 40960
v_bfe_u32 v29, v{vC}, 2, 1
v_lshlrev_b32 v29, 10, v29
v_lshrrev_b32 v30, 3, v{vC}
v_lshl_add_u32 v29, v30, 6, v29
v_and_b32 v30, 3, v{vC}
v_lshl_add_u32 v29, v30, 4, v29
s_and_b32 s60, s{sW}, 1
s_lshl_b32 s60, s60, 7
v_add_u32 v29, s60, v29
v_and_b32 v30, 0xfc00, v{vXa}
v_and_b32 v27, 0x300, v{vXa}
v_lshl_add_u32 v27, v30, 1, v27
v_add_u32 v27, v27, v29
v_and_b32 v30, 0xfc00, v{vXb}
v_and_b32 v28, 0x308, v{vXb}
v_lshl_add_u32 v28, v30, 1, v28
v_add_u32 v28, v28, v29""")
        yield from G.each(f"""s_add_u32 s67, s67, s{sLoff}
s_add_u32 s67, s67, {(ws.X0 if second else ws.X1) + nxt}
s_lshl_b32 s68, s{sRT2}, 10
s_lshl_b32 s61, s{sCT}, 7
s_add_u32 s68, s68, s61
s_add_u32 s68, s68, s{sLoff}
s_add_u32 s68, s68, {(ws.ST0 if second else ws.ST1) + nxt}
s_lshl_b32 s63, s66, 3
s_add_u32 s63, s63, s{sCT}
s_lshl_b32 s63, s63, 1
s_and_b32 s60, s{sW}, 1
s_add_u32 s63, s63, s60
s_lshl_b32 s63, s63, 2
s_add_u32 s63, s63, {ws.F_X2 if second else ws.F_X1}""")
    frags, fill = [], {}
    for ks in range(nks):
        for b in range(5):
            r, o = G.lds(place(G_OUT if second else G_O, ks * 5120 + 1024 * b))
            frags.append((r, o, ("A", ks) if b == 0 else None, [f"{MF} {v(ACC + 4 * b, 4)}, {{B}}, {a(4 * ks, 4)}, {v(ACC + 4 * b, 4)}"]))
        if ks + D < nks: fill.setdefault(5 * ks + 1, []).append(AL[ks + D])
    if not second:
        G.spread(fill, G.dma(sTI, G_IN, range(G.opt("win_p1", 6), 13)), 66, 4)
    def touch_x():
        e.vm(f"buffer_load_dword v31, v27, {W}, s67 offen sc1")
        e.vm(f"buffer_load_dword v31, v27, {W}, s67 offen offset:{1024 if second else 2048} sc1")
        e.vm(f"buffer_load_dword v31, v28, {W}, s67 offen sc1")
        e.vm(f"buffer_load_dword v31, v26, {W}, s68 offen sc1")
    if G.opt("touch", 1): fill.setdefault(5 * (nks - D) - 2, []).append(touch_x)
    G.gemm(frags, RING, 12, fill, {0: lambda: e("s_barrier")}, s1(), 1, 14)
    G.stamp(21 if second else 12)
    for j in range(10): e(f"v_cvt_pk_bf16_f32 v{vXR + j}, v{ACC + 2 * j}, v{ACC + 2 * j + 1}")
    if second:
        mid = e.newlabel("notlast")
        e(f"""s_cmp_eq_u32 s{sLay}, 1
s_cbranch_scc0 {mid}
s_mul_i32 s60, s{sRT2}, 20480
s_mul_i32 s61, s{sCT}, 160
s_add_u32 s60, s60, s61
v_mul_u32_u24 v26, 1280, v{vC}
v_lshl_add_u32 v27, v{vG}, 3, v26
v_lshl_add_u32 v26, v{vG}, 4, v26
buffer_store_dwordx4 {v(vXR, 4)}, v26, s[{OUTR}:{OUTR+3}], s60 offen
buffer_store_dwordx4 {v(vXR + 4, 4)}, v26, s[{OUTR}:{OUTR+3}], s60 offen offset:64
buffer_store_dwordx2 {v(vXR + 8, 2)}, v27, s[{OUTR}:{OUTR+3}], s60 offen offset:128
s_branch LFIN""")
        e.label(mid)
    e.vm(f"buffer_store_dwordx4 {v(vXR, 4)}, v27, {W}, s67 offen", "xst")
    e.vm(f"buffer_store_dwordx4 {v(vXR + 4, 4)}, v27, {W}, s67 offen offset:{1024 if second else 2048}", "xst")
    e.vm(f"buffer_store_dwordx2 {v(vXR + 8, 2)}, v28, {W}, s67 offen", "xst")
    pk(e, "mul", 62, [("p", ACC), ("p", ACC)])
    pk(e, "mul", 64, [("p", ACC + 2), ("p", ACC + 2)])
    pk(e, "add", 60, [("p", ACC), ("p", ACC + 2)])
    pk(e, "add", 66, [("p", ACC + 4), ("p", ACC + 6)])
    for j in range(2, 10):
        pk(e, "fma", 62 + 2 * (j & 1), [("p", ACC + 2 * j), ("p", ACC + 2 * j), ("p", 62 + 2 * (j & 1))])
        if j > 3: pk(e, "add", 60 + 6 * (j & 1), [("p", 60 + 6 * (j & 1)), ("p", ACC + 2 * j)])
    pk(e, "add", 60, [("p", 60), ("p", 66)])
    pk(e, "add", 62, [("p", 62), ("p", 64)])
    e(f"""v_add_f32 v60, v60, v61
v_add_f32 v62, v62, v63
v_permlane16_swap_b32 v60, v62
v_add_f32 v60, v60, v62
v_mov_b32 v62, v60
v_permlane32_swap_b32 v60, v62
v_add_f32 v60, v60, v62
s_mov_b32 exec_hi, 0""")
    e.vm(f"buffer_store_dword v60, v26, {W}, s68 offen", "xst")
    e("s_mov_b64 exec, -1\ns_barrier")
    steps = G.dma(sTQ, G_QKV, range(8, 13)) if second else G.dma(sTI, G_IN, range(13, G.opt("win_p2", 21)))
    n0 = G.opt("pre_flag", 6)
    for st in steps[:n0]: st()
    e.wait_vm("xst")
    G.flag("s63", True)
    G.stamp(22 if second else 13)
    for st in steps[n0:]: st()

def wsp_reg(ks): return a(160 + 4 * ks, 4) if ks < 24 else v(224 + 4 * (ks - 24), 4)

def p3(G):
    e, ws = G.e, G.ws
    Z2, Z1, RING = 40, 64, 104
    NM, RS, CS2, NMT, RST, CS1, T0 = 144, 88, 160, 164, 166, 168, 192
    e(f"""s_lshl_b32 s63, s{sX}, 3
s_lshl_b32 s60, s{sRB}, 2
s_add_u32 s63, s63, s60
s_add_u32 s63, s63, s{sW}
s_lshl_b32 s63, s63, 6
s_add_u32 s63, s63, {ws.F_X1}
v_lshlrev_b32 v26, 2, v{vLane}
s_lshl_b32 s62, s{sRT1}, 10
s_add_u32 s62, s62, s{sLoff}
s_add_u32 s62, s62, {ws.ST1}
s_mul_i32 s64, s{sRT1}, 20480
s_add_u32 s64, s64, s{sLoff}
s_add_u32 s64, s64, {ws.X1}""")
    G.poll(26, "s63", "0xffff", True)
    G.stamp(14)
    AL = a_loads(G, 64, 2, 20, lambda ks, T: (2 * ks + T) * 1024)
    D = 4
    AL[0]()
    e.vm(f"buffer_load_dwordx4 {v(T0, 4)}, v{vL0}, {W}, s62 offen sc1", "st")
    e.vm(f"buffer_load_dwordx4 {v(T0 + 4, 4)}, v{vL0}, {W}, s62 offen offset:1024 sc1", "st")
    for ks in range(1, D): AL[ks]()
    def s1():
        for m in range(4):
            yield from G.each(f"""v_add_u32 v26, {4 * m}, v{vG}
v_xor_b32 v26, v26, v{vC}
v_lshlrev_b32 v26, 4, v26
v_lshl_add_u32 v{100 + m}, v{vG}, 12, v26""")
        yield from G.each(f"""s_lshl_b32 s67, s{sX}, 2
s_add_u32 s67, s67, s{sRQ}
s_lshl_b32 s67, s67, 1
s_and_b32 s60, s{sW}, 1
s_add_u32 s68, s67, s60
s_xor_b32 s69, s68, 1
s_lshl_b32 s68, s68, 17
s_lshl_b32 s69, s69, 17
s_add_u32 s68, s68, s{sWK}
s_add_u32 s69, s69, s{sWK}
s_lshl_b32 s70, s{sW}, 15
v_and_b32 v26, 31, v{vLane}
v_lshrrev_b32 v27, 5, v{vLane}
v_xor_b32 v27, v27, v{vC}
v_lshlrev_b32 v27, 4, v27
v_lshl_add_u32 v27, v26, 8, v27
v_add_u32 v152, s70, v27""")
        yield from G.each("\n".join(f"v_xor_b32 v{152 + j}, {32 * j}, v152" for j in range(1, 8)))
        yield from G.row_stats(T0, T0 + 4, T0 + 8)
        yield from G.each(f"""v_lshrrev_b32 v27, 3, v{vC}
v_bfe_u32 v28, v{vC}, 2, 1
v_and_b32 v29, 3, v{vC}
v_lshl_add_u32 v29, v28, 3, v29
v_lshlrev_b32 v38, 4, v29
v_lshl_add_u32 v39, v27, 4, v29
v_lshl_add_u32 v32, v{vG}, 5, s65
v_lshl_add_u32 v31, v39, 2, s65
v_lshlrev_b32 v28, 2, v{vC}
v_add_u32 v28, {L_CSI}, v28
v_lshlrev_b32 v29, 4, v{vG}
v_add_u32 v29, {L_CSI + 192}, v29""")
        rds = []
        for T in range(2):
            rds += [f"ds_read_b128 {v(NM + 4 * T, 4)}, v32 offset:{16 * T}", f"ds_read_b128 {v(RS + 4 * T, 4)}, v32 offset:{128 + 16 * T}",
                    f"ds_read_b32 v{NMT + T}, v31 offset:{16 * T}", f"ds_read_b32 v{RST + T}, v31 offset:{128 + 16 * T}"]
        rds += [f"ds_read_b32 v{CS2 + b}, v28 offset:{64 * b}" for b in range(3)]
        rds += [f"ds_read_b128 {v(CS1 + 4 * b, 4)}, v29 offset:{64 * b}" for b in range(3)]
        for r in rds:
            e.ds(r, "cst"); yield; yield
        yield from G.each(f"""v_lshrrev_b32 v26, 3, v{vC}
v_lshlrev_b32 v26, 7, v26
v_lshl_add_u32 v26, v{vG}, 5, v26
v_bfe_u32 v27, v{vC}, 2, 1
v_lshl_add_u32 v33, v27, 4, v26
s_lshr_b32 s66, s{sRT1}, 1
s_lshl_b32 s66, s66, 12
s_add_u32 s66, s66, s{sSoff}
s_add_u32 s66, s66, {ws.S3}
s_lshl_b32 s71, s{sCG}, 8
s_add_u32 s71, s71, s66""")
    def wsp(sb, st, slot, tag):
        def f(m):
            e(f"s_add_u32 s{sSrc}, s{sb}, {m * 16384 + st * 256}\ns_add_u32 m0, s70, {slot * 8192 + m * 1024}")
            e.vm(f"buffer_load_dwordx4 v{100 + (m & 3)}, s[{WSPR}:{WSPR+3}], s{sSrc} offen lds", tag)
        return [lambda m=m: f(m) for m in range(8)]
    def wrd(st, slot):
        return [lambda j=j: e.ds(f"ds_read_b128 {wsp_reg(8 * st + j)}, v{152 + j} offset:{8192 * slot}", "?wrd") for j in range(8)]
    frags, fill = [], {}
    for ks in range(20):
        for b in range(3):
            r, o = G.lds(place(G_IN, ks * 3072 + 1024 * b))
            ms = [f"{MF} {v(Z2 + (2 * b + T) * 4, 4)}, {a((2 * ks + T) * 4, 4)}, {{B}}, {'0' if ks == 0 else v(Z2 + (2 * b + T) * 4, 4)}" for T in range(2)]
            frags.append((r, o, ("A", ks) if b == 0 else None, ms))
        if ks + D < 20: fill.setdefault(3 * ks + 1, []).append(AL[ks + D])
    wp2 = G.opt("win_p2", 21)
    pair = lambda fs: [G.first_layer(fs[i:i + 2]) for i in range(0, len(fs), 2)]
    late = G.dma(sTI, G_IN, range(wp2, 30), "Bz1") + pair(wsp(68, 0, 2, "?wa"))
    G.spread(fill, late[:9], 49, 1.2)
    G.gemm(frags, RING, 10, fill, {0: lambda: e("s_barrier")}, s1(), 3, 2)
    e("s_barrier")
    G.stamp(15)
    late = late[9:] + pair(wsp(68, 1, 1, "?wa"))
    z2 = lambda b, T, h: Z2 + (2 * b + T) * 4 + 2 * h
    idx = [(b, T, h) for b in range(3) for T in range(2) for h in range(2)]
    e.wait_ds("cst")
    for b, T, h in idx: pk(e, "fma", z2(b, T, h), [("p", NM + 4 * T + 2 * h), ("b", CS2 + b), ("p", z2(b, T, h))])
    its = [(z2(b, T, h), ("p", RS + 4 * T + 2 * h)) for b, T, h in idx]
    for i in range(0, 12, 2):
        for st in late[:2]: st()
        late = late[2:]
        gelu(e, its[i:i + 2], T0)
    assert not late
    S, Q, O8 = T0, T0 + 8, T0 + 16
    TH = [(T, h) for T in range(2) for h in range(2)]
    for T, h in TH: pk(e, "add", S + 4 * T + 2 * h, [("p", z2(0, T, h)), ("p", z2(1, T, h))])
    for T, h in TH: pk(e, "mul", Q + 4 * T + 2 * h, [("p", z2(0, T, h)), ("p", z2(0, T, h))])
    for T, h in TH: pk(e, "add", S + 4 * T + 2 * h, [("p", S + 4 * T + 2 * h), ("p", z2(2, T, h))])
    for b in (1, 2):
        for T, h in TH: pk(e, "fma", Q + 4 * T + 2 * h, [("p", z2(b, T, h)), ("p", z2(b, T, h)), ("p", Q + 4 * T + 2 * h)])
    for j in range(8): e(f"v_add_f32_dpp v{O8 + j}, v{S + j}, v{S + j} row_ror:8 row_mask:0xf bank_mask:0x3")
    for j in range(8): e(f"v_add_f32_dpp v{O8 + j}, v{Q + j}, v{Q + j} row_ror:8 row_mask:0xf bank_mask:0xc")
    for j in range(4): e(f"v_add_f32_dpp v{S + j}, v{O8 + j}, v{O8 + j} row_half_mirror row_mask:0xf bank_mask:0x5")
    for j in range(4): e(f"v_add_f32_dpp v{S + j}, v{O8 + 4 + j}, v{O8 + 4 + j} row_half_mirror row_mask:0xf bank_mask:0xa")
    for j in range(4): e(f"v_add_f32_dpp v{S + j}, v{S + j}, v{S + j} quad_perm:[1,0,3,2] row_mask:0xf bank_mask:0xf")
    for j in range(4): e(f"v_add_f32_dpp v{S + j}, v{S + j}, v{S + j} quad_perm:[2,3,0,1] row_mask:0xf bank_mask:0xf")
    fast, done = e.newlabel("s3f"), e.newlabel("s3d")
    e(f"""s_mov_b32 exec_lo, 0x11111111
s_mov_b32 exec_hi, 0x11111111
s_cmp_eq_u32 s{sMode}, 0
s_cbranch_scc1 {fast}
buffer_store_dwordx4 {v(S, 4)}, v33, {W}, s71 offen sc1
s_branch {done}""")
    e.label(fast)
    e.vm(f"buffer_store_dwordx4 {v(S, 4)}, v33, {W}, s71 offen")
    e.label(done)
    e("s_mov_b64 exec, -1")
    G.stamp(16)
    GS = 208
    def gat():
        for m in range(4): e.vm(f"buffer_load_dwordx4 {v(GS + 4 * m, 4)}, v{vL0}, {W}, s66 offen offset:{1024 * m} sc1", "sent")
    def s2():
        yield from G.each(f"""v_lshrrev_b32 v27, 3, v{vC}
v_mul_u32_u24 v27, 24576, v27
v_add_u32 v27, v27, v38
s_mul_i32 s60, s{sCG}, 6
v_add_u32 v26, s60, v{vG}
v_lshl_add_u32 v26, v26, 8, v27
v_lshrrev_b32 v28, 1, v{vG}
v_add3_u32 v28, v28, s60, 4
v_lshl_add_u32 v27, v28, 8, v27
v_and_b32 v28, 1, v{vG}
v_lshl_add_u32 v27, v28, 3, v27
s_mul_i32 s72, s{sRT1}, 24576
s_add_u32 s72, s72, s{sLoff}
s_add_u32 s72, s72, {ws.Z1}
v_add_u32 v29, s65, v{vL0}
v_lshrrev_b32 v30, 1, v{vG}
v_mul_u32_u24 v30, 3072, v30
v_and_b32 v31, 1, v{vG}
v_lshl_add_u32 v30, v31, 9, v30
v_lshl_add_u32 v30, v{vC}, 4, v30
s_lshr_b32 s61, s{sCG}, 1
s_lshl_b32 s61, s61, 7
s_add_u32 s61, s61, s{sRT1}
s_mul_i32 s61, s61, 3072
s_add_u32 s61, s61, s{sLoff}
s_add_u32 s61, s61, {ws.ZT}
s_and_b32 s62, s{sCG}, 1
s_mul_i32 s62, s62, 3""")
        for b in range(3):
            yield from G.each(f"""s_add_u32 s60, s62, {b}
s_lshr_b32 s{73 + b}, s60, 1
s_lshl_b32 s{73 + b}, s{73 + b}, 10
s_and_b32 s60, s60, 1
s_lshl_b32 s60, s60, 8
s_add_u32 s{73 + b}, s{73 + b}, s60
s_add_u32 s{73 + b}, s{73 + b}, s61""")
        yield from G.each(f"""s_lshl_b32 s63, s{sX}, 5
s_add_u32 s63, s63, s{sL}
s_lshl_b32 s63, s63, 7
s_add_u32 s63, s63, {ws.F_Z}""")
        e(f"s_cmp_eq_u32 s{sW}, 0\ns_cselect_b32 s63, s63, {OOB:#x}")
        yield
    frags, fill = [], {}
    for ks in range(20):
        for b in range(3):
            r, o = G.lds(place(G_IN, 61440 + ks * 3072 + 1024 * b))
            ms = [f"{MF} {v(Z1 + (2 * b + T) * 4, 4)}, {{B}}, {a((2 * ks + T) * 4, 4)}, {'0' if ks == 0 else v(Z1 + (2 * b + T) * 4, 4)}" for T in range(2)]
            frags.append((r, o, None, ms))
    w0 = G.opt("w_c0", 4)
    fill[w0] = [G.first_layer([lambda: e.wait_vm("?wa")])]
    G.spread(fill, pair(wrd(0, 2) + wrd(1, 1)), w0, 2)
    fill.setdefault(w0 + 18, []).append(G.first_layer([lambda: e.wait_ds("?wrd")]))
    G.spread(fill, pair(wsp(68, 2, 2, "?wb") + wsp(68, 3, 1, "?wb")), w0 + 18, 3)
    fill.setdefault(G.opt("s3gat", 50), []).append(gat)
    def touch_z():
        e.vm(f"buffer_load_dword v34, v26, {W}, s72 offen sc1")
        e.vm(f"buffer_load_dword v34, v27, {W}, s72 offen sc1")
    if G.opt("touch", 1): fill.setdefault(12, []).append(touch_z)
    G.gemm(frags, RING, 10, fill, {4 * wp2 - 60: G.bar("Bz1")}, s2(), 2, 1)
    z1 = lambda b, T, h: Z1 + (2 * b + T) * 4 + 2 * h
    G.first_layer([lambda: e.wait_vm("?wb")] + wrd(2, 2) + [lambda: e.wait_ds("?wrd")] + wrd(3, 1))()
    for b, T, h in idx: pk(e, "fma", z1(b, T, h), [("p", CS1 + 4 * b + 2 * h), ("b", NMT + T), ("p", z1(b, T, h))])
    e.wait_ds()
    e("s_barrier")
    G.stamp(17)
    r2 = [f for st in range(4) for f in wsp(69, st, st, "wsp")]
    its = [(z1(b, T, h), ("b", RST + T)) for b, T, h in idx]
    for i in range(0, 12, 2):
        r2[i](); r2[i + 1]()
        gelu(e, its[i:i + 2], T0)
    for T in range(2):
        o = T0 + 6 * T
        for b in range(3):
            for h in range(2): e(f"v_cvt_pk_bf16_f32 v{o + 2 * b + h}, v{z1(b, T, h)}, v{z1(b, T, h) + 1}")
        e.vm(f"buffer_store_dwordx4 {v(o, 4)}, v26, {W}, s72 offen offset:{64 * T}", "zst")
        e.vm(f"buffer_store_dwordx2 {v(o + 4, 2)}, v27, {W}, s72 offen offset:{64 * T}", "zst")
    sentinel_retry(G, gat, [GS + j for j in range(16)], 64)
    for h in range(2):
        pk(e, "add", GS + 2 * h, [("p", GS + 2 * h), ("p", GS + 4 + 2 * h)])
        pk(e, "add", GS + 8 + 2 * h, [("p", GS + 8 + 2 * h), ("p", GS + 12 + 2 * h)])
    for h in range(2): pk(e, "add", GS + 2 * h, [("p", GS + 2 * h), ("p", GS + 8 + 2 * h)])
    run(G.xreduce([GS + j for j in range(4)], GS + 4))
    for j in range(4): e(f"v_mov_b32_dpp v{GS + 4 + j}, v{GS + j} row_ror:8 row_mask:0xf bank_mask:0xf")
    run(G.moments(GS, 768))
    for j in range(4): e(f"v_mul_f32 v{GS + j}, v{GS + j}, v{GS + 4 + j}")
    e("s_mov_b64 exec, 0xff")
    e.ds(f"ds_write_b128 v29, {v(GS, 4)}")
    e.ds(f"ds_write_b128 v29, {v(GS + 4, 4)} offset:128")
    e("s_mov_b64 exec, -1")
    for T in range(2):
        e.ds(f"ds_read_b128 {v(NM + 4 * T, 4)}, v32 offset:{16 * T}")
        e.ds(f"ds_read_b128 {v(RS + 4 * T, 4)}, v32 offset:{128 + 16 * T}")
    e.wait_ds()
    for b in range(3):
        o = 64 + 4 * b
        for T, h in TH: pk(e, "fma", z2(b, T, h), [("p", z2(b, T, h)), ("p", RS + 4 * T + 2 * h), ("p", NM + 4 * T + 2 * h)])
        for T, h in TH: e(f"v_cvt_pk_bf16_f32 v{o + 2 * T + h}, v{z2(b, T, h)}, v{z2(b, T, h) + 1}")
        e.vm(f"buffer_store_dwordx4 {v(o, 4)}, v30, {W}, s{73 + b} offen sc1", "zst")
    for st in r2[12:22]: st()
    e.wait_vm("zst")
    sk = e.newlabel("nowb")
    e(f"s_cmp_eq_u32 s{sMode}, 0\ns_cbranch_scc1 {sk}\nbuffer_wbl2 sc1\ns_waitcnt vmcnt(0)")
    e.label(sk)
    e("s_barrier")
    G.flag("s63", False)
    G.stamp(18)
    for st in r2[22:]: st()

def p4(G):
    e, ws = G.e, G.ws
    ACC, WB, ZL, ZU, BI = 40, 136, 160, 172, 196
    acc = lambda fb, tb: ACC + (2 * fb + tb) * 16
    e(f"""v_lshrrev_b32 v26, 2, v{vLane}
s_lshl_b32 s60, s{sW}, 1
v_add_u32 v26, s60, v26
v_mov_b32 v27, s{sX}
v_cmp_gt_u32 vcc, 8, v{vLane}
v_cndmask_b32 v26, v27, v26, vcc
v_bfe_u32 v27, v{vLane}, 1, 1
s_lshr_b32 s60, s{sRQ}, 1
v_mov_b32 v28, s60
v_cndmask_b32 v27, v28, v27, vcc
v_lshlrev_b32 v26, 5, v26
v_lshl_add_u32 v26, v27, 4, v26
v_and_b32 v27, 1, v{vLane}
s_lshl_b32 s60, s{sCT}, 1
v_add3_u32 v26, v26, v27, s60
v_lshlrev_b32 v26, 7, v26
s_mov_b32 s63, {ws.F_Z}
s_lshr_b32 s60, s{sW}, 1
s_lshl_b32 s60, s60, 8
v_xor_b32 v30, s60, v{vL0}
s_lshl_b32 s64, s{sCT}, 7
s_lshl_b32 s60, s{sW}, 5
s_add_u32 s64, s64, s60
s_mul_i32 s64, s64, 3072
s_add_u32 s64, s64, s{sLoff}
s_add_u32 s64, s64, {ws.ZT}
v_bfe_u32 v27, v{vLane}, 4, 1
v_mul_u32_u24 v31, 24576, v27
v_lshrrev_b32 v27, 5, v{vLane}
s_and_b32 s60, s{sW}, 2
v_add_u32 v27, s60, v27
v_lshl_add_u32 v31, v27, 8, v31
v_lshl_add_u32 v31, v{vC}, 4, v31
s_lshl_b32 s67, s{sX}, 2
s_add_u32 s67, s67, s{sRQ}
s_lshl_b32 s67, s67, 1
s_and_b32 s60, s{sW}, 1
s_add_u32 s67, s67, s60
s_lshl_b32 s66, s67, 6
s_mul_i32 s65, s67, 49152
s_mul_i32 s60, s{sCT}, 3072
s_add_u32 s65, s65, s60
s_add_u32 s65, s65, s{sLoff}
v_and_b32 v27, 31, v{vLane}
v_lshlrev_b32 v27, 1, v27""")
    for rel in range(4):
        e(f"s_xor_b32 s60, s{sW}, {rel}\ns_lshl_b32 s61, s60, 15\ns_add_u32 s61, s61, 16384\nv_add_u32 v{32 + rel}, s61, v{vL0}")
        if rel in (0, 3): e(f"s_lshl_b32 s61, s60, 11\nv_add_u32 v{36 + (rel & 1)}, s61, v{vL2}")
    G.poll(26, "s63", "0x3ff", True)
    G.stamp(19)
    D = G.opt("p4d", 13)
    def zl(ks):
        e(f"s_add_u32 s{sSrc}, s64, {3072 * ks}")
        for fb in range(3):
            e.vm(f"buffer_load_dwordx4 {a(((ks % D) * 3 + fb) * 4, 4)}, v30, {W}, s{sSrc} offen offset:{1024 * fb} sc1", ("Z", ks))
    for ks in range(D - 1): zl(ks)
    def rd(ks): e.ds(f"ds_read_b128 {v(WB + 4 * (ks & 3), 4)}, v{152 + (ks & 7)} offset:{8192 * (ks >> 3)}", ("W", ks))
    for ks in range(3): rd(ks)
    def late():
        e(f"s_add_u32 s60, s65, {ws.Z1}")
        for fb in range(3): e.vm(f"buffer_load_dwordx4 {v(ZL + 4 * fb, 4)}, v31, {W}, s60 offen offset:{1024 * fb} sc1", "z1")
        e.vm(f"buffer_load_ushort v{BI}, v27, s[{BSPR}:{BSPR+3}], s66 offen", "z1")
        if G.opt("touch", 1):
            e(f"s_add_u32 s60, s65, {ws.U}")
            for fb in range(3): e.vm(f"buffer_load_dword v28, v31, {W}, s60 offen offset:{1024 * fb} sc1")
    early = G.dma(sTW, G_OUT, range(20))
    k0 = max(33 - D, 18)
    def unpack():
        e.wait_vm("z1")
        for j in range(12):
            yield from G.each(f"v_lshlrev_b32 v{ZU + 2 * j}, 16, v{ZL + j}\nv_and_b32 v{ZU + 2 * j + 1}, 0xffff0000, v{ZL + j}")
        yield from G.each(f"""v_lshlrev_b32 v{BI}, 16, v{BI}
s_lshl_b32 s63, s67, 3
s_add_u32 s63, s63, s{sCT}
s_lshl_b32 s63, s63, 1
s_lshr_b32 s60, s{sW}, 1
s_add_u32 s63, s63, s60
s_lshl_b32 s63, s63, 2
s_add_u32 s63, s63, {ws.F_U}
s_add_u32 s65, s65, {ws.U}""")
    un = unpack()
    for ks in range(32):
        e.wait_vm(("Z", ks))
        for fb in range(3):
            z = a(((ks % D) * 3 + fb) * 4, 4)
            e(f"{MF32} {v(acc(fb, 0), 16)}, {z}, {wsp_reg(ks)}, {'0' if ks == 0 else v(acc(fb, 0), 16)}")
            if fb == 0:
                if ks + D - 1 < 32: zl(ks + D - 1)
                if ks == k0: late(); e("s_barrier")
                e.wait_ds(("W", ks))
            if ks > k0 and fb > 0 and early: early.pop(0)()
            if ks >= 29:
                for _ in range(4): next(un, None)
            e(f"{MF32} {v(acc(fb, 1), 16)}, {z}, {v(WB + 4 * (ks & 3), 4)}, {'0' if ks == 0 else v(acc(fb, 1), 16)}")
        if ks + 3 < 32: rd(ks + 3)
    run(un)
    for st in early: st()
    e("s_barrier")
    G.stamp(23)
    def red(rel, n, base, extra):
        m = (rel - 1) * 6 + n
        return (base, m * 1024) if m < 16 else (extra, (m - 16) * 1024)
    for rel in range(1, 4):
        for n in range(6):
            r, o = red(rel, n, 32 + rel, 37)
            e.ds(f"ds_write_b128 v{r}, {v(acc(n >> 1, rel & 1) + 8 * (rel >> 1) + 4 * (n & 1), 4)} offset:{o}")
            if len(e.lgq) >= 14: e.wait_ds()
    for fb in range(3):
        for j in range(4):
            d = acc(fb, 0) + 2 * j
            pk(e, "add", d, [("p", d), ("b", BI)])
    e.wait_ds()
    e("s_barrier")
    dst = lambda rel, n: acc(n >> 1, 1 if rel < 3 else 0) + (8 if rel > 1 else 0) + 4 * (n & 1)
    for n in range(6):
        for rel in range(1, 4):
            r, o = red(rel, n, 32, 36)
            e.ds(f"ds_read_b128 {v(dst(rel, n), 4)}, v{r} offset:{o}", ("R", n >> 1))
        if n == 4: e.wait_ds(("R", 0))
    for fb in range(3):
        e.wait_ds(("R", fb))
        if fb == 2: e("s_barrier")
        for rel in range(1, 4):
            for j in range(4):
                d = acc(fb, 0) + 2 * j
                pk(e, "add", d, [("p", d), ("p", dst(rel, 2 * fb + (j >> 1)) + 2 * (j & 1))])
        for j in range(4):
            d = acc(fb, 0) + 2 * j
            pk(e, "mul", d, [("p", d), ("p", ZU + 8 * fb + 2 * j)])
        for j in range(4): e(f"v_cvt_pk_bf16_f32 v{136 + 4 * fb + j}, v{acc(fb, 0) + 2 * j}, v{acc(fb, 0) + 2 * j + 1}")
        e.vm(f"buffer_store_dwordx4 {v(136 + 4 * fb, 4)}, v31, {W}, s65 offen offset:{1024 * fb}", "ust")
    steps = G.dma(sTW, G_OUT, range(20, 30)) + G.dma(sTQ, G_QKV, range(8))
    n0 = G.opt("pre_flag", 6)
    for st in steps[:n0]: st()
    e.wait_vm("ust")
    G.flag("s63", True)
    G.stamp(24)
    for st in steps[n0:]: st()

def body(G):
    e, ws = G.e, G.ws
    e("s_branch LP1_GO")
    p1(G)
    if G.finish(1): return
    proj(G, False)
    if G.finish(2): return
    p3(G)
    if G.finish(3): return
    p4(G)
    if G.finish(4): return
    proj(G, True)
    if G.finish(5): return
    e(f"""s_mov_b32 s{sLay}, 1
s_mov_b32 s{sLoff}, {ws.LSTR}
s_add_u32 s{sFV}, s{sBase}, 1
s_mov_b32 s{sKoff}, {ws.KVP_L}
s_mov_b32 s{sSoff}, {ws.S3_L}""")
    if G.prof: e("s_lshl_b64 s[98:99], s[98:99], 30")
    e("s_branch LP1_WAIT")
```

```python
import sys, struct, math
from kemit import *
from layout import *

NAME = "interleave_layers__linear_attn_block__mixer_gmlp__prompt_kernel"
def f2u(x): return struct.unpack("<I", struct.pack("<f", x))[0]
LOG2E = 1.4426950408889634

WSR, XR_, QKVR, WOR, WINR, WSPR, BSPR, WOUTR, OUTR, DBGR = 4, 8, 12, 16, 20, 24, 28, 32, 36, 40
sW, sX, sL, sMode, sLay, sLoff, sFV, sKoff, sSoff = range(44, 53)
sRB, sCG, sRQ, sCT, sRT1, sRT2, sXCC = range(53, 60)
sSrc, sWK, sSpin = 80, 81, 82
sTQ, sTO, sTI, sTW = 94, 95, 96, 97
vL0, vL1, vL2 = 1, 2, 3
vXR = 4
vPROF, vLane = 14, 15
vK01, vC1E = 16, 18
vXa, vXb, vG, vC = 20, 21, 22, 23
SPIN_MAX = 20000
sBase = 83

class Gen:
    def __init__(self, stop=99, reuse=False, prof=False, force_slow=False, opts=None):
        self.opts = opts or {}
        self.e = Emit(); self.stop = stop; self.prof = prof; self.force_slow = force_slow
        self.ws = WS(reuse)

    def opt(self, k, d): return self.opts.get(k, d)

    def srd(self, d, base, nbytes):
        self.e(f"s_mov_b32 s{d}, s{base}\ns_and_b32 s{d+1}, s{base+1}, 0xffff\ns_mov_b32 s{d+2}, {nbytes:#x}\ns_mov_b32 s{d+3}, 0x20000")

    def stamp(self, i):
        if not self.prof: return
        e = self.e
        e.wait_ds()
        e(f"s_memtime s[100:101]\ns_waitcnt lgkmcnt(0)\ns_lshl_b64 exec, s[98:99], {i}\nv_mov_b32 v{vPROF}, s100\ns_mov_b64 exec, -1")

    def sdiv(self, d, x, div, maxx):
        mul, sh = magic(div, maxx)
        self.e(f"s_mul_i32 s{d}, s{x}, {mul}\ns_lshr_b32 s{d}, s{d}, {sh}")

    def lds(self, addr):
        k = addr >> 16
        return f"v{vL0 + k}", addr & 0xffff

    def poll(self, vaddr, soff, mask, local, val=sFV, anycode=False):
        e = self.e
        top, done = e.newlabel("poll"), e.newlabel("pdone")
        e(f"s_mov_b64 exec, {mask}\ns_mov_b32 s{sSpin}, 0")
        e.label(top)
        e(f"""buffer_load_dword v24, v{vaddr}, s[{WSR}:{WSR+3}], {soff} offen sc1
s_add_u32 s{sSpin}, s{sSpin}, 1
s_waitcnt vmcnt(0)
{f"v_xor_b32 v24, s{val}, v24" + chr(10) + "v_cmp_gt_u32 vcc, 16, v24" if anycode else f"v_cmp_eq_u32 vcc, s{val}, v24"}
s_cmp_eq_u64 vcc, exec
s_cbranch_scc1 {done}
s_cmp_lt_u32 s{sSpin}, {SPIN_MAX}
s_cbranch_scc1 {top}
s_branch LEND""")
        e.label(done)
        e("s_mov_b64 exec, -1")
        e.vmq = []
        if local:
            sk = e.newlabel("noinv")
            e(f"s_cmp_eq_u32 s{sMode}, 0\ns_cbranch_scc1 {sk}\nbuffer_inv sc1\ns_waitcnt vmcnt(0)")
            e.label(sk)

    def flag(self, soff, local):
        e = self.e
        e(f"v_mov_b32 v24, s{sFV}\nv_mov_b32 v25, 0\ns_mov_b64 exec, 1")
        if local:
            fast, done = e.newlabel("ffast"), e.newlabel("fdone")
            e(f"""s_cmp_eq_u32 s{sMode}, 0
s_cbranch_scc1 {fast}
buffer_wbl2 sc1
s_waitcnt vmcnt(0)
buffer_store_dword v24, v25, s[{WSR}:{WSR+3}], {soff} offen sc1
s_branch {done}""")
            e.label(fast)
            e.vm(f"buffer_store_dword v24, v25, s[{WSR}:{WSR+3}], {soff} offen", "flag")
            e.label(done)
        else:
            e.vm(f"buffer_store_dword v24, v25, s[{WSR}:{WSR+3}], {soff} offen sc1", "flag")
        e("s_mov_b64 exec, -1")

    def dma(self, stile, gmap, grans, tag="dma"):
        e = self.e
        def step(g):
            e(f"s_add_u32 s{sSrc}, s{stile}, {g * 4096}\ns_add_u32 m0, s{sWK}, {gmap[g] * 4096}")
            e.vm(f"buffer_load_dwordx4 v{vL0}, s[{WSR}:{WSR+3}], s{sSrc} offen sc1 lds", tag)
        return [lambda g=g: step(g) for g in grans]

    def gemm(self, frags, ring, R, fill=None, pre=None, stream=None, rate=2, sfirst=0):
        e = self.e
        fill = fill or {}; pre = pre or {}
        n = len(frags)
        def rd(j):
            if j in pre: pre[j]()
            e.ds(f"ds_read_b128 {v(ring + 4 * (j % R), 4)}, {frags[j][0]} offset:{frags[j][1]}", ("B", j))
        for j in range(min(R - 1, n)): rd(j)
        for j in range(n):
            if frags[j][2] is not None: e.wait_vm(frags[j][2])
            e.wait_ds(("B", j))
            for i, m in enumerate(frags[j][3]):
                e(m.format(B=v(ring + 4 * (j % R), 4)))
                if i == 0 and stream is not None and j >= sfirst:
                    for _ in range(rate): next(stream, None)
            if j + R - 1 < n: rd(j + R - 1)
            for f in fill.get(j, []): f()
        if stream is not None:
            for _ in stream: pass

    def each(self, text):
        for line in text.strip("\n").split("\n"):
            self.e(line); yield

    def first_layer(self, fs):
        def f():
            sk = self.e.newlabel("l0")
            self.e(f"s_cmp_eq_u32 s{sLay}, 0\ns_cbranch_scc0 {sk}")
            for x in fs: x()
            self.e.label(sk)
        return f

    def bar(self, tag):
        return lambda: (self.e.wait_vm(tag), self.e("s_barrier"))

    def spread(self, fill, steps, first, every):
        for i, st in enumerate(steps): fill.setdefault(first + int(i * every), []).append(st)

    def xreduce(self, regs, tmp):
        for op in ("v_permlane16_swap_b32", "v_permlane32_swap_b32"):
            yield from self.each("\n".join(f"v_mov_b32 v{tmp + i}, v{r}" for i, r in enumerate(regs)))
            yield from self.each("\n".join(f"{op} v{r}, v{tmp + i}" for i, r in enumerate(regs)))
            yield from self.each("\n".join(f"v_add_f32 v{r}, v{r}, v{tmp + i}" for i, r in enumerate(regs)))

    def moments(self, t, n):
        J = range(4)
        yield from self.each(f"s_mov_b32 s60, {f2u(-1.0 / n):#x}\ns_mov_b32 s61, {f2u(1.0 / n):#x}")
        yield from self.each("\n".join(
            [f"v_mul_f32 v{t + j}, s60, v{t + j}" for j in J] + [f"v_mul_f32 v{t + 8 + j}, v{t + j}, v{t + j}" for j in J] +
            [f"v_fma_f32 v{t + 4 + j}, v{t + 4 + j}, s61, -v{t + 8 + j}" for j in J] + [f"v_max_f32 v{t + 4 + j}, 0, v{t + 4 + j}" for j in J] +
            [f"v_add_f32 v{t + 4 + j}, {f2u(1e-5):#x}, v{t + 4 + j}" for j in J] + [f"v_rsq_f32 v{t + 4 + j}, v{t + 4 + j}" for j in J]))

    def row_stats(self, ra, rb_, t):
        e = self.e
        e.wait_vm("st")
        for j in range(4): yield from self.each(f"v_add_f32_dpp v{t + j}, v{ra + j}, v{ra + j} row_ror:8 row_mask:0xf bank_mask:0x3")
        for j in range(4): yield from self.each(f"v_add_f32_dpp v{t + j}, v{rb_ + j}, v{rb_ + j} row_ror:8 row_mask:0xf bank_mask:0xc")
        yield from self.xreduce([t + j for j in range(4)], t + 4)
        for j in range(4): yield from self.each(f"v_mov_b32_dpp v{t + 4 + j}, v{t + j} row_shl:4 row_mask:0xf bank_mask:0xf")
        yield from self.moments(t, 640)
        yield from self.each(f"""v_lshrrev_b32 v{t + 8}, 3, v{vC}
v_and_b32 v{t + 9}, 3, v{vC}
v_lshlrev_b32 v{t + 9}, 4, v{t + 9}
v_lshl_add_u32 v{t + 8}, v{t + 8}, 6, v{t + 9}
s_lshl_b32 s65, s{sW}, 8
s_add_u32 s65, s65, {L_ST}
v_add_u32 v{t + 8}, s65, v{t + 8}""")
        e("s_mov_b64 exec, 0x0f0f")
        e.ds(f"ds_write_b128 v{t + 8}, {v(t, 4)}")
        e.ds(f"ds_write_b128 v{t + 8}, {v(t + 4, 4)} offset:128", "stw")
        e("s_mov_b64 exec, -1")
        yield

    def finish(self, phase):
        if self.stop == phase:
            self.e("s_branch LFIN")
            return True
        return False

    def gather(self, srd, voff, sbase, rowb, dst, tag, extra=None):
        e = self.e
        for j in range(8):
            va = voff
            if extra: va = extra(j)
            else: e(f"s_add_u32 s60, s{sbase}, {j * rowb}")
            e.vm(f"buffer_load_ushort v{dst + j}, v{va}, s[{srd}:{srd+3}], s60 offen", tag)

    def merge(self, src, dst):
        for j in range(4): self.e(f"v_lshl_or_b32 v{dst + j}, v{src + 2 * j + 1}, 16, v{src + 2 * j}")

    def paircol(self, d, sbase, sblk, last):
        self.e(f"""s_lshr_b32 s61, s{sblk}, 1
s_lshl_b32 s61, s61, 5
s_add_u32 s60, s{sbase}, s61
s_and_b32 s61, s{sblk}, 1
s_lshl_b32 s61, s61, 2
s_add_u32 s60, s60, s61
s_cmp_eq_u32 s{sblk}, {last}
s_cselect_b32 s62, 4, 8
v_lshrrev_b32 v40, 2, v{vC}
v_and_b32 v{d}, 3, v{vC}
v_mad_u32_u24 v{d}, v40, s62, v{d}
v_add_lshl_u32 v{d}, v{d}, s60, 1""")

    def phase0(self):
        e, ws = self.e, self.ws
        W = f"s[{WSR}:{WSR+3}]"
        MF = "v_mfma_f32_16x16x32_bf16"
        e(f"""s_cmp_ge_u32 s2, 256
s_cbranch_scc1 LEND
s_load_dwordx16 s[64:79], s[0:1], 0
s_load_dwordx4 s[88:91], s[0:1], 64
s_load_dwordx2 s[92:93], s[0:1], 80
s_getpc_b64 s[60:61]
s_lshr_b32 s62, s2, 3
s_lshl_b32 s62, s62, 4
v_lshrrev_b32 v24, 6, v0
v_and_b32 v25, 3, v0
v_lshl_add_u32 v25, v24, 2, v25
v_add_lshl_u32 v25, v25, s62, 7
v_min_u32 v25, LCODE_END - {NAME} - 64, v25""")
        e.vm("global_load_dword v26, v25, s[60:61]")
        if self.prof: e("s_mov_b64 s[98:99], 1\nv_mov_b32 v14, 0")
        e(f"""s_getreg_b32 s{sXCC}, hwreg(HW_REG_XCC_ID, 0, 4)
v_and_b32 v{vLane}, 63, v0
v_lshlrev_b32 v{vL0}, 4, v{vLane}
v_readfirstlane_b32 s{sW}, v24
v_add_u32 v{vL1}, 0x10000, v{vL0}
v_add_u32 v{vL2}, 0x20000, v{vL0}
v_lshrrev_b32 v{vG}, 4, v{vLane}
v_and_b32 v{vC}, 15, v{vLane}
v_mov_b32 v{vK01}, {f2u(-2 * 0.7978845608028654 * LOG2E):#x}
v_mov_b32 v{vK01 + 1}, {f2u(-2 * 0.7978845608028654 * 0.044715 * LOG2E):#x}
v_mov_b32 v{vC1E}, 1.0
v_mov_b32 v{vC1E + 1}, {f2u(1e-6):#x}
v_mov_b32 v36, {OOB:#x}
s_mov_b32 s{sLay}, 0
s_mov_b32 s{sLoff}, 0
s_mov_b32 s{sKoff}, 0
s_mov_b32 s{sSoff}, 0
s_lshl_b32 s{sWK}, s{sW}, 10""")
        for j in range(4): e(f"v_mov_b32 v{28 + j}, -1\nv_mov_b32 v{116 + j}, 0x3f803f80")
        e("s_waitcnt lgkmcnt(0)")
        self.srd(WSR, 92, ws.END); self.srd(XR_, 64, XA_SZ)
        self.srd(QKVR, 66, 640 * 3840); self.srd(WOR, 68, 640 * 1280)
        self.srd(WINR, 72, 640 * 3072); self.srd(WSPR, 74, 2048 * 4096); self.srd(BSPR, 76, 4096); self.srd(WOUTR, 78, 768 * 1280)
        self.srd(OUTR, 88, XA_SZ); self.srd(DBGR, 90, 256)
        if self.prof:
            e("s_memrealtime s[100:101]\ns_waitcnt lgkmcnt(0)\ns_lshl_b64 exec, s[98:99], 63\nv_mov_b32 v14, s100\ns_mov_b64 exec, -1")
        self.stamp(0)
        e(f"""s_lshr_b32 s64, s2, 1
s_and_b32 s65, s2, 1
s_mul_i32 s61, s{sW}, 3
s_mul_i32 s62, s65, 10
v_mul_u32_u24 v37, 1280, v{vC}
v_lshl_add_u32 v37, v{vG}, 4, v37
s_mul_i32 s69, s64, 20480""")
        for i in range(3):
            e(f"""s_add_u32 s63, s61, {i}
s_cmp_lt_u32 s63, 10
s_cselect_b32 s70, 0, {OOB:#x}
s_add_u32 s63, s63, s62
s_lshl_b32 s60, s63, 6
s_add_u32 s60, s60, s69
s_add_u32 s60, s60, s70
s_lshl_b32 s63, s63, 10
s_add_u32 s{66 + i}, s63, s70""")
            e.vm(f"buffer_load_dwordx4 {v(88 + 4 * i, 4)}, v37, s[{XR_}:{XR_+3}], s60 offen", "x")
        nt, top, done = e.newlabel("notag"), e.newlabel("probe"), e.newlabel("tagok")
        e(f"s_lshl_b32 s60, s2, 2\ns_add_u32 s60, s60, s{sW}\ns_cmp_eq_u32 s60, 1020\ns_cbranch_scc0 {nt}\ns_mov_b32 s60, {ws.FLAGS}\nv_lshlrev_b32 v24, 7, v{vLane}")
        for j in range(16):
            e(f"buffer_load_dwordx4 {v(124 + 4 * j, 4)}, v{vL0}, {W}, s60 offen offset:{1024 * (j & 3)} sc1")
            if j & 3 == 3: e("s_add_u32 s60, s60, 4096")
        for j in range(8):
            e(f"s_mov_b32 s60, {(ws.F_Z if j < 4 else ws.FA) + 8192 * (j & 3)}\nbuffer_load_dword v{188 + j}, v24, {W}, s60 offen sc1")
        e("s_mov_b32 s60, 0x5a5a5a40\ns_waitcnt vmcnt(0)")
        e.label(top)
        e("s_add_u32 s60, s60, 16\nv_mov_b32 v24, -1")
        for j in range(0, 72, 2):
            e(f"v_xor_b32 v25, s60, v{124 + j}\nv_xor_b32 v26, s60, v{125 + j}\nv_min3_u32 v24, v24, v25, v26")
        e(f"""v_cmp_gt_u32 vcc, 16, v24
s_cmp_eq_u64 vcc, 0
s_cbranch_scc0 {top}
v_mov_b32 v24, s60
v_mov_b32 v25, 0
s_mov_b64 exec, 1
buffer_store_dword v24, v25, s[{DBGR}:{DBGR+3}], 0 offen sc1
s_mov_b64 exec, -1
s_waitcnt vmcnt(0)""")
        e.label(nt)
        e(f"""s_and_b32 s60, s2, 7
s_lshr_b32 s61, s2, 5
s_lshl_b32 s61, s61, 3
s_add_u32 s60, s60, s61
s_cmp_lt_u32 s60, 60
s_cselect_b32 s73, 0, {OOB:#x}""")
        self.sdiv(70, 60, 3, 63)
        qb, cd = e.newlabel("qreg"), e.newlabel("cdone")
        e(f"""s_mul_i32 s61, s70, 3
s_sub_u32 s71, s60, s61
s_bfe_u32 s72, s2, 0x20003
s_lshl_b32 s72, s72, 2
s_add_u32 s72, s72, s{sW}
s_mul_i32 s74, s72, 40
v_mul_u32_u24 v39, {8 * 3840}, v{vG}
s_mul_i32 s75, s72, {T_QKV}
s_add_u32 s75, s75, {ws.PW_QKV}
s_add_u32 s75, s75, s73
s_cmp_eq_u32 s71, 2
s_cbranch_scc1 {qb}
s_mul_i32 s60, s70, 5120
s_add_u32 s75, s75, s60
s_lshl_b32 s60, s71, 11
s_add_u32 s75, s75, s60
s_mul_i32 s60, s71, 632
s_add_u32 s74, s74, s60
s_add_u32 s74, s74, 640
s_lshl_b32 s61, s71, 3""")
        for i in range(3):
            e(f"""v_add_u32 v40, {16 * i}, v{vC}
v_add_lshl_u32 v{44 + i}, v40, s74, 1
v_add_u32 v{44 + i}, v{44 + i}, v39
v_add_u32 v{47 + i}, {1024 * i}, v{vL0}
v_subrev_u32 v40, s61, v40
v_cmp_gt_u32 vcc, 40, v40
v_cndmask_b32 v{44 + i}, v36, v{44 + i}, vcc
v_cndmask_b32 v{47 + i}, v36, v{47 + i}, vcc""")
        e(f"s_branch {cd}")
        e.label(qb)
        e(f"""s_lshl_b32 s60, s70, 11
s_add_u32 s75, s75, s60
s_add_u32 s75, s75, {Q_FULL}
v_lshrrev_b32 v41, 2, v{vC}
v_mul_u32_u24 v42, 5, v41""")
        for i in range(3):
            e(f"""v_and_b32 v40, 3, v{vC}
v_add_u32 v40, {4 * i}, v40
v_cmp_le_u32 vcc, 5, v40
v_cndmask_b32 v43, 0, 15, vcc
v_add3_u32 v43, v43, v40, v42
v_add_lshl_u32 v{44 + i}, v43, s74, 1
v_add_u32 v{44 + i}, v{44 + i}, v39""")
        e(f"""v_mov_b32 v47, v{vL0}
v_add_u32 v48, 1024, v{vL0}
v_lshlrev_b32 v41, 1, v41
v_and_b32 v43, 1, v{vC}
v_add_u32 v41, v41, v43
v_lshl_add_u32 v41, v{vG}, 3, v41
s_mul_i32 s60, s70, 1536
s_sub_u32 s60, {Q_HALF - Q_FULL}, s60
v_lshl_add_u32 v49, v41, 4, s60
v_cmp_gt_u32 vcc, 10, v40
v_cndmask_b32 v46, v36, v46, vcc
v_cndmask_b32 v49, v36, v49, vcc""")
        e.label(cd)
        e(f"s_mul_i32 s76, s70, {32 * 3840}\ns_add_u32 s76, s76, s73")
        for i in range(3):
            self.gather(QKVR, 44 + i, 76, 3840, 64 + 8 * i, ("gq", i))
        self.sdiv(76, 2, 12, 255)
        e(f"""s_mul_i32 s60, s76, 12
s_sub_u32 s79, s2, s60
s_lshl_b32 s79, s79, 2
s_add_u32 s79, s79, s{sW}
s_lshl_b32 s79, s79, 1
s_cmp_lt_u32 s2, 240
s_cselect_b32 s96, 0, {OOB:#x}
v_mul_u32_u24 v39, {8 * 3072}, v{vG}
s_mul_i32 s86, s76, {32 * 3072}
s_add_u32 s86, s86, s96""")
        for i in range(2):
            z2, cd = e.newlabel("z2b"), e.newlabel("cdone")
            e(f"s_add_u32 s63, s79, {i}\ns_cmp_ge_u32 s63, 48\ns_cselect_b32 s60, 48, 0\ns_sub_u32 s63, s63, s60")
            self.sdiv(84, 63, 3, 47)
            e(f"""s_mul_i32 s60, s84, 3
s_sub_u32 s85, s63, s60
s_mul_i32 s{77 + i}, s84, {T_IN}
s_lshl_b32 s60, s85, 10
s_add_u32 s{77 + i}, s{77 + i}, s60
s_mul_i32 s60, s76, 3072
s_add_u32 s{77 + i}, s{77 + i}, s60
s_add_u32 s{77 + i}, s{77 + i}, {ws.PW_IN}
s_add_u32 s{77 + i}, s{77 + i}, s96
s_mul_i32 s87, s84, 20
s_add_u32 s87, s87, s76
s_mul_i32 s87, s87, 384
s_lshl_b32 s60, s85, 6
s_add_u32 s87, s87, s60
s_add_u32 s87, s87, {ws.CS_IN}
s_add_u32 s87, s87, s96
s_cmp_ge_u32 s79, 48
s_cbranch_scc1 {z2}
s_add_u32 s{77 + i}, s{77 + i}, 61440
s_add_u32 s87, s87, 192
s_mul_i32 s63, s84, 48""")
            self.paircol(38, 63, 85, 2)
            e(f"s_branch {cd}")
            e.label(z2)
            e(f"""s_lshl_b32 s60, s63, 4
s_add_u32 s60, s60, 768
v_and_b32 v38, 3, v{vC}
v_bfe_u32 v40, v{vC}, 2, 1
v_lshl_add_u32 v38, v40, 3, v38
v_lshrrev_b32 v40, 3, v{vC}
v_lshl_add_u32 v38, v40, 2, v38
v_add_lshl_u32 v38, v38, s60, 1""")
            e.label(cd)
            e(f"v_add_u32 v38, v38, v39\nv_lshl_add_u32 v{50 + i}, v{vC}, 2, s87")
            self.gather(WINR, 38, 86, 3072, 124 + 8 * i, ("gi", i))
        self.sdiv(96, 2, 5, 255)
        wout, cd = e.newlabel("wout"), e.newlabel("cdone")
        m5, h5 = magic(5, 95)
        e(f"""s_mul_i32 s60, s96, 5
s_sub_u32 s87, s2, s60
s_lshl_b32 s87, s87, 2
s_add_u32 s87, s87, s{sW}
s_lshl_b32 s87, s87, 1
s_cmp_lt_u32 s2, 220
s_cselect_b32 s79, 0, {OOB:#x}
s_cmp_ge_u32 s96, 20
s_cbranch_scc1 {wout}
s_mov_b32 s92, {T_O}
s_mov_b32 s93, {ws.PW_O}
s_mov_b32 s86, {15 * 1280}
s_mov_b32 s88, s{WOR}
s_mov_b32 s89, s{WOR + 1}
s_mov_b32 s90, {640 * 1280}
s_lshl_b32 s60, s96, 2
v_add_u32 v40, s60, v{vG}
v_mul_u32_u24 v41, {m5}, v40
v_lshrrev_b32 v41, {h5}, v41
v_mul_u32_u24 v42, 5, v41
v_sub_u32 v40, v40, v42
v_cmp_eq_u32 vcc, 4, v40
v_cndmask_b32 v53, 0, 1, vcc
v_cndmask_b32 v40, v40, 0, vcc
v_mul_u32_u24 v40, 5, v40
v_mad_u32_u24 v52, v41, 40, v40
s_branch {cd}""")
        e.label(wout)
        e(f"""s_sub_u32 s96, s96, 20
s_mov_b32 s92, {T_OUT}
s_mov_b32 s93, {ws.PW_OUT}
s_mov_b32 s86, 0
s_mov_b32 s88, s{WOUTR}
s_mov_b32 s89, s{WOUTR + 1}
s_mov_b32 s90, {768 * 1280}
s_lshl_b32 s60, s96, 5
v_lshlrev_b32 v52, 3, v{vG}
v_add_u32 v52, s60, v52
v_mov_b32 v53, 0""")
        e.label(cd)
        e(f"s_mov_b32 s91, 0x20000\nv_mul_u32_u24 v52, 1280, v52\ns_mul_i32 s60, s96, 5120\ns_add_u32 s93, s93, s60\ns_add_u32 s93, s93, s79")
        P = [0, 1, 2, 3, 4, 20, 21, 22]; Q = [23, 24, 28, 29, 33, 34, 38, 39]
        for i in range(2):
            e(f"s_add_u32 s63, s87, {i}")
            self.sdiv(94, 63, 5, 39)
            e(f"""s_mul_i32 s60, s94, 5
s_sub_u32 s95, s63, s60
s_mul_i32 s{84 + i}, s94, s92
s_add_u32 s{84 + i}, s{84 + i}, s93
s_lshl_b32 s60, s95, 10
s_add_u32 s{84 + i}, s{84 + i}, s60
s_mul_i32 s63, s94, 80""")
            self.paircol(38, 63, 95, 4)
            e("v_add_u32 v38, v38, v52")
            def extra(j):
                e(f"s_mov_b32 s61, {(Q[j] - P[j]) * 1280}\nv_mad_u32_u24 v43, v53, s61, v38\ns_add_u32 s60, s79, {j * 1280}")
                if j >= 5: e("s_add_u32 s60, s60, s86")
                return 43
            self.gather(88, None, None, None, 140 + 8 * i, ("go", i), extra)
        self.stamp(1)
        e.wait_vm("x")
        e(f"s_add_u32 s69, s69, {ws.X0}")
        for i in range(3):
            e(f"s_add_u32 s60, s69, s{66 + i}")
            e.vm(f"buffer_store_dwordx4 {v(88 + 4 * i, 4)}, v{vL0}, {W}, s60 offen sc1")
        e("v_mov_b32 v122, 0\nv_mov_b32 v123, 0")
        for j in range(12):
            e(f"v_dot2c_f32_bf16 v122, v{88 + j}, v116\nv_dot2c_f32_bf16 v123, v{88 + j}, v{88 + j}")
        e(f"""v_permlane16_swap_b32 v122, v123
v_add_f32 v122, v122, v123
v_mov_b32 v123, v122
v_permlane32_swap_b32 v122, v123
v_add_f32 v122, v122, v123
s_lshl_b32 s60, s65, 2
s_add_u32 s60, s60, s{sW}
s_lshl_b32 s60, s60, 7
s_lshl_b32 s61, s64, 10
s_add_u32 s60, s60, s61
s_add_u32 s60, s60, {ws.ST0}
v_lshlrev_b32 v37, 2, v{vLane}
v_cmp_gt_u32 vcc, 32, v{vLane}
v_cndmask_b32 v39, v36, v37, vcc""")
        e.vm(f"buffer_store_dword v122, v39, {W}, s60 offen sc1")
        for i in range(3):
            e.wait_vm(("gq", i))
            self.merge(64 + 8 * i, 100 + 4 * i)
            e(f"{MF} {v(160 + 4 * i, 4)}, v[116:119], {v(100 + 4 * i, 4)}, 0")
            e.vm(f"buffer_store_dwordx4 {v(100 + 4 * i, 4)}, v{47 + i}, {W}, s75 offen sc1")
        e(f"""s_mul_i32 s60, s72, 20
s_add_u32 s60, s60, s70
s_lshl_b32 s60, s60, 9
s_lshl_b32 s61, s71, 1
s_lshr_b32 s62, s71, 1
s_add_u32 s61, s61, s62
s_lshl_b32 s61, s61, 6
s_add_u32 s60, s60, s61
s_add_u32 s60, s60, {ws.CS_QKV}
s_add_u32 s60, s60, s73
v_cmp_eq_u32 vcc, 1, v{vG}
v_cndmask_b32 v160, v160, v164, vcc
v_cndmask_b32 v47, v47, v48, vcc
v_cmp_eq_u32 vcc, 2, v{vG}
v_cndmask_b32 v160, v160, v168, vcc
v_cndmask_b32 v47, v47, v49, vcc
v_cmp_gt_u32 vcc, v36, v47
v_cndmask_b32 v39, v36, v37, vcc
v_cmp_gt_u32 vcc, 48, v{vLane}
v_cndmask_b32 v39, v36, v39, vcc""")
        e.vm(f"buffer_store_dword v160, v39, {W}, s60 offen sc1")
        for i in range(2):
            e.wait_vm(("gi", i))
            self.merge(124 + 8 * i, 64 + 4 * i)
            e(f"{MF} {v(164 + 4 * i, 4)}, v[116:119], {v(64 + 4 * i, 4)}, 0")
            e.vm(f"buffer_store_dwordx4 {v(64 + 4 * i, 4)}, v{vL0}, {W}, s{77 + i} offen sc1")
        for i in range(2):
            e.wait_vm(("go", i))
            self.merge(140 + 8 * i, 72 + 4 * i)
            e.vm(f"buffer_store_dwordx4 {v(72 + 4 * i, 4)}, v{vL0}, {W}, s{84 + i} offen sc1")
        e(f"""v_cmp_eq_u32 vcc, 1, v{vG}
v_cndmask_b32 v164, v164, v168, vcc
v_cndmask_b32 v50, v50, v51, vcc
v_cmp_gt_u32 vcc, 32, v{vLane}
v_cndmask_b32 v50, v36, v50, vcc""")
        e.vm(f"buffer_store_dword v164, v50, {W}, 0 offen sc1")
        e(f"""s_mul_i32 s60, s2, {POISON_PER_WG}
s_mul_i32 s61, s{sW}, {POISON_PER_WG // 4}
s_add_u32 s60, s60, s61
s_add_u32 s60, s60, {ws.POISON}
v_cmp_gt_u32 vcc, 12, v{vLane}
v_cndmask_b32 v37, v36, v{vL0}, vcc""")
        e.vm(f"buffer_store_dwordx4 v[28:31], v{vL0}, {W}, s60 offen sc1")
        e.vm(f"buffer_store_dwordx4 v[28:31], v{vL0}, {W}, s60 offen offset:1024 sc1")
        e.vm(f"buffer_store_dwordx4 v[28:31], v37, {W}, s60 offen offset:2048 sc1")
        self.stamp(2)
        top, done = e.newlabel("tag"), e.newlabel("tagd")
        e(f"v_mov_b32 v26, 0\ns_mov_b32 s{sSpin}, 0")
        e.label(top)
        e(f"""buffer_load_dword v24, v26, s[{DBGR}:{DBGR+3}], 0 offen sc1
s_add_u32 s{sSpin}, s{sSpin}, 1
s_waitcnt vmcnt(0)
v_readfirstlane_b32 s{sBase}, v24
s_cmp_lg_u32 s{sBase}, 0
s_cbranch_scc1 {done}
s_cmp_lt_u32 s{sSpin}, {SPIN_MAX}
s_cbranch_scc1 {top}
s_branch LEND""")
        e.label(done)
        e(f"""s_barrier
s_mov_b32 s{sFV}, s{sBase}
s_lshl_b32 s63, s2, 7
s_add_u32 s63, s63, {ws.FA}
s_cmp_eq_u32 s{sW}, 0
s_cselect_b32 s63, s63, {OOB:#x}
s_add_u32 s60, s{sXCC}, s{sBase}
v_mov_b32 v24, s60
v_mov_b32 v25, 0
s_mov_b64 exec, 1
buffer_store_dword v24, v25, {W}, s63 offen sc1
s_mov_b64 exec, -1
v_lshlrev_b32 v26, 7, v0
s_mov_b32 s63, {ws.FA}""")
        self.stamp(3)
        self.poll(26, "s63", "-1", False, anycode=True)
        if self.opt("spec", 0):
            e("v_mov_b32_dpp v25, v24 row_ror:8 row_mask:0xf bank_mask:0xf\nv_cmp_ne_u32 s[66:67], v24, v25")
        e(f"""v_cmp_gt_u32 s[62:63], s{sXCC}, v24
v_cmp_eq_u32 s[64:65], s{sXCC}, v24
v_cmp_gt_u32 vcc, s2, v0
s_and_b64 s[64:65], s[64:65], vcc
s_or_b64 s[62:63], s[62:63], s[64:65]
s_bcnt1_i32_b64 s61, s[62:63]
v_mov_b32 v27, s61""")
        for j in range(8):
            e(f"v_cmp_eq_u32 vcc, {j}, v24\ns_bcnt1_i32_b64 s61, vcc\nv_writelane_b32 v27, s61, {j + 1}")
        e(f"""s_lshl_b32 s60, s{sW}, 6
s_add_u32 s60, s60, {L_ST}
v_lshl_add_u32 v28, v{vLane}, 2, s60
s_mov_b64 exec, 0xffff
ds_write_b32 v28, v27
s_mov_b64 exec, -1
v_lshlrev_b32 v28, 2, v{vC}
v_add_u32 v28, {L_ST}, v28
s_waitcnt lgkmcnt(0)
s_barrier
ds_read2_b32 v[24:25], v28 offset0:0 offset1:16
ds_read2_b32 v[26:27], v28 offset0:32 offset1:48
s_waitcnt lgkmcnt(0)
v_add_u32 v24, v24, v25
v_add3_u32 v24, v24, v26, v27
v_cmp_ne_u32 vcc, 32, v24
v_readfirstlane_b32 s60, v24
s_and_b32 s{sMode}, vcc_lo, 0x1fe""")
        if self.opt("spec", 0):
            e(f"s_or_b32 s66, s66, s67\ns_or_b32 s{sMode}, s{sMode}, s66")
        self.stamp(4)
        if self.force_slow: e(f"s_mov_b32 s{sMode}, 1\ns_mov_b32 s60, s2")
        e(f"""s_and_b32 s60, s60, 255
s_lshr_b32 s{sX}, s60, 5
s_and_b32 s{sL}, s60, 31
s_lshr_b32 s{sRB}, s{sL}, 4
s_and_b32 s{sCG}, s{sL}, 15
s_lshr_b32 s{sRQ}, s{sL}, 3
s_and_b32 s{sCT}, s{sL}, 7
s_lshl_b32 s60, s{sX}, 4
s_lshl_b32 s61, s{sRB}, 3
s_add_u32 s{sRT1}, s60, s61
s_lshl_b32 s61, s{sW}, 1
s_add_u32 s{sRT1}, s{sRT1}, s61
s_lshl_b32 s61, s{sRQ}, 2
s_add_u32 s{sRT2}, s60, s61
s_add_u32 s{sRT2}, s{sRT2}, s{sW}""")
        for r, idx, t, b in ((sTQ, sCG, T_QKV, ws.PW_QKV), (sTO, sCT, T_O, ws.PW_O), (sTI, sCG, T_IN, ws.PW_IN), (sTW, sCT, T_OUT, ws.PW_OUT)):
            e(f"s_mul_i32 s{r}, s{idx}, {t}\ns_add_u32 s{r}, s{r}, {b}\ns_add_u32 s{r}, s{r}, s{sWK}")
        e(f"""s_mul_i32 s60, s{sCT}, 10
v_add_u32 v24, s60, v{vG}
v_lshlrev_b32 v{vXa}, 8, v24
v_lshl_add_u32 v{vXa}, v{vC}, 4, v{vXa}
v_lshrrev_b32 v24, 1, v{vG}
v_add3_u32 v24, v24, s60, 8
v_lshlrev_b32 v{vXb}, 8, v24
v_lshl_add_u32 v{vXb}, v{vC}, 4, v{vXb}
v_and_b32 v24, 1, v{vG}
v_lshl_add_u32 v{vXb}, v24, 3, v{vXb}
v_lshlrev_b32 v28, 2, v0
v_subrev_u32 v29, 512, v28
v_cmp_gt_u32 vcc, 128, v0
v_cndmask_b32 v29, v29, v28, vcc
s_mul_i32 s60, s{sCG}, {20 * 512}
s_add_u32 s60, s60, {ws.CS_QKV}
s_mul_i32 s61, s{sCG}, {20 * 384}
s_add_u32 s61, s61, {ws.CS_IN}
v_mov_b32 v30, s61
v_mov_b32 v31, s60
v_cndmask_b32 v30, v30, v31, vcc
v_add_u32 v29, v29, v30
v_mov_b32 v30, 384
v_mov_b32 v31, 512
v_cndmask_b32 v30, v30, v31, vcc
v_cmp_gt_u32 vcc, 224, v0
v_cndmask_b32 v29, v36, v29, vcc""")
        for st in self.dma(sTQ, G_QKV, range(13), "B0"): st()
        e("v_mov_b32 v236, v29\nv_mov_b32 v237, v30")
        self.entry_vmq = list(e.vmq)

    def build(self):
        e = self.e
        e.label(NAME)
        self.phase0()
        if not self.finish(0):
            from phases import body
            body(self)
        e.label("LFIN")
        if self.prof:
            self.e.lgq = []
            e(f"""s_memrealtime s[100:101]
s_waitcnt lgkmcnt(0)
s_mov_b64 exec, 1
s_lshl_b64 exec, exec, 62
v_mov_b32 v14, s100
s_mov_b64 exec, -1
s_lshl_b32 s60, s{sX}, 5
s_add_u32 s60, s60, s{sL}
s_lshl_b32 s60, s60, 2
s_add_u32 s60, s60, s{sW}
s_lshl_b32 s60, s60, 8
s_add_u32 s60, s60, {self.ws.PROF}
v_lshlrev_b32 v24, 2, v{vLane}
buffer_store_dword v14, v24, s[{WSR}:{WSR+3}], s60 offen""")
            if self.opt("dbgout", 0):
                e(f"s_cmp_eq_u32 s60, {self.ws.PROF + 256 * 4 * 100}\ns_cbranch_scc0 LEND\nv_readlane_b32 s61, v14, 0\nv_readlane_b32 s62, v14, 63\nv_readlane_b32 s63, v14, 62\ns_sub_u32 s63, s63, s62\nv_mov_b32 v25, s63")
                for n, i in enumerate((4, 6, 10, 12, 15, 18, 23, 21, 36, 42, 45, 48, 53, 51)):
                    e(f"v_readlane_b32 s63, v14, {i}\ns_sub_u32 s63, s63, s61\nv_writelane_b32 v25, s63, {n + 2}")
                e(f"s_mov_b64 exec, 0xfffe\nbuffer_store_dword v25, v24, s[{DBGR}:{DBGR+3}], 0 offen")
        e.label("LEND")
        e("s_endpgm")
        e.label("LCODE_END")
        lines, nops = pad_hazards(e.L)
        head = f"""; Persistent kernel: one workgroup per CU, phases chained through flags in d_ws. Generated by dev/gen.py.
; @launch grid=(256,1,1) block=(256,1,1) lds={LDS_BYTES}
.amdgcn_target "amdgcn-amd-amdhsa--gfx950"
.text
.globl {NAME}
.p2align 8
.type {NAME},@function
"""
        tail = f"""
.fill 64, 4, 0xbf800000
.section .rodata,"a"
.p2align 6
.amdhsa_kernel {NAME}
  .amdhsa_next_free_vgpr 512
  .amdhsa_next_free_sgpr 102
  .amdhsa_accum_offset 256
  .amdhsa_group_segment_fixed_size 0
  .amdhsa_kernarg_size 88
  .amdhsa_user_sgpr_count 2
  .amdhsa_user_sgpr_kernarg_segment_ptr 1
  .amdhsa_system_sgpr_workgroup_id_x 1
.end_amdhsa_kernel
"""
        return head + "\n".join(("" if l.endswith(":") else "    ") + l for l in lines) + tail, nops

if __name__ == "__main__":
    import argparse
    ap = argparse.ArgumentParser()
    ap.add_argument("-o", default="k.s"); ap.add_argument("--stop", type=int, default=99)
    ap.add_argument("--reuse", action="store_true"); ap.add_argument("--prof", action="store_true"); ap.add_argument("--slow", action="store_true")
    ap.add_argument("--opt", action="append", default=[])
    x = ap.parse_args()
    t, nops = Gen(x.stop, x.reuse, x.prof, x.slow, {k: int(val) for k, val in (o.split("=") for o in x.opt)}).build()
    open(x.o, "w").write(t)
    print("lines", t.count("\n"), "nops", nops)
```
